```python
import torch

def _softmax(x, axis=-1):
    return torch.softmax(x, dim=axis)
def _gelu(x):
    return torch.nn.functional.gelu(x, approximate="tanh")
def _silu(x):
    return torch.nn.functional.silu(x)
def _sigmoid(x):
    return torch.sigmoid(x)
def _layernorm(x, axis=-1, eps=1e-5):
    m = x.mean(dim=axis, keepdim=True)
    v = x.var(dim=axis, keepdim=True, unbiased=False)
    return (x - m) / torch.sqrt(v + eps)
def _scatter_add(tgt, idx, src, axis=0):
    return tgt.clone().index_add_(axis, idx, src)
def _segment_sum(src, seg, n):
    out = torch.zeros((n,) + src.shape[1:], dtype=src.dtype)
    return out.index_add_(0, seg, src)
def _pad(x, pw):
    flat = tuple(v for pair in reversed(pw) for v in pair)
    return torch.nn.functional.pad(x, flat)

kernel_name = 'gated_mix__linear_kernel_hedgehog__moe_arch_mod__prompt'

def setup_inputs():

    _w = (lambda a: (lambda t: t.to(torch.bfloat16) if t.is_floating_point() else t)(torch.as_tensor(a)))
    def _A_setup():
        B, S, D, H = 1, 2048, 1024, 32
        Dh = D // H
        return {
            "x": _w((lambda *s: torch.randn(*s, dtype=torch.bfloat16) * 0.05)(B, S, D)),
            "wqkv": _w((lambda *s: torch.randn(*s, dtype=torch.bfloat16) * 1.6)(D, 3 * D)),
            "w_phi": _w((lambda *s: torch.randn(*s, dtype=torch.bfloat16) * 1.6)(H, Dh, Dh) * (Dh ** -0.5)),
            "wo": _w((lambda *s: torch.randn(*s, dtype=torch.bfloat16) * 1.6)(D, D)),
        }
    _A_in = _A_setup()

    def _B_setup():
        B, S, D, F, C = 1, 2048, 1024, 3584, 1
        return {
            "x": _w((lambda *s: torch.randn(*s, dtype=torch.bfloat16) * 0.05)(B, S, D)),
            "w_r": _w((lambda *s: torch.randn(*s, dtype=torch.bfloat16) * 1.6)(D)),
            "w_gate": _w((lambda *s: torch.randn(*s, dtype=torch.bfloat16) * 0.8)(D, F)),
            "w_up": _w((lambda *s: torch.randn(*s, dtype=torch.bfloat16) * 0.8)(D, F)),
            "w_down": _w((lambda *s: torch.randn(*s, dtype=torch.bfloat16) * 0.8)(F, D)),
        }
    _B_in = _B_setup()

    return {
        "A_x": _A_in["x"],
        "A_wqkv": _A_in["wqkv"],
        "A_w_phi": _A_in["w_phi"],
        "A_wo": _A_in["wo"],
        "B_x": _B_in["x"],
        "B_w_r": _B_in["w_r"],
        "B_w_gate": _B_in["w_gate"],
        "B_w_up": _B_in["w_up"],
        "B_w_down": _B_in["w_down"],
        "gate_w": _w((lambda *s: torch.randn(*s, dtype=torch.bfloat16) * 0.05)(1024) * 16.0),
    }

def reference(A_x, A_wqkv, A_w_phi, A_wo, B_x, B_w_r, B_w_gate, B_w_up, B_w_down, gate_w):
    def _A_ref(x, wqkv, w_phi, wo):
        B, S, D = x.shape
        H = 32; Dh = D // H
        qkv = (lambda x, *d: x.permute(*d))((x @ wqkv).reshape(B, S, 3, H, Dh), 2, 0, 3, 1, 4)
        q, k, v = qkv[0], qkv[1], qkv[2]
        pq = torch.einsum("bhsd,hdf->bhsf", q, w_phi)
        pk = torch.einsum("bhsd,hdf->bhsf", k, w_phi)
        phi_q = torch.concatenate([_softmax(pq, axis=-1), _softmax(-pq, axis=-1)], axis=-1)
        phi_k = torch.concatenate([_softmax(pk, axis=-1), _softmax(-pk, axis=-1)], axis=-1)
        kv = torch.einsum("bhsf,bhsd->bhfd", phi_k, v)
        z  = torch.einsum("bhsf->bhf", phi_k)
        num = torch.einsum("bhqf,bhfd->bhqd", phi_q, kv)
        den = torch.einsum("bhqf,bhf->bhq", phi_q, z)[..., None] + 1e-6
        o = num / den
        return (lambda x, *d: x.permute(*d))(o, 0, 2, 1, 3).reshape(B, S, D) @ wo

    def _B_ref(x, w_r, w_gate, w_up, w_down):
        B, S, D = x.shape
        C = 1
        r = x @ w_r
        idx = torch.argsort(-r, axis=-1)[:, :C]
        idx_e = (lambda x, n, axis: torch.repeat_interleave(x, n, dim=axis))(idx.reshape(B, C, 1), D, axis=2)
        x_sel = (lambda x, i, axis: torch.take_along_dim(x, i, dim=axis))(x, idx_e, axis=1)
        g = _silu(x_sel @ w_gate)
        u = x_sel @ w_up
        y = (g * u) @ w_down
        r_sel = _sigmoid((lambda x, i, axis: torch.take_along_dim(x, i, dim=axis))(r, idx, axis=1))
        y = y * r_sel.reshape(B, C, 1)
        b_off = (torch.arange(B) * S).reshape(B, 1)
        flat_idx = (idx + b_off).reshape(B * C)
        zero = (x * 0.0).reshape(B * S, D)
        upd = _scatter_add(zero, flat_idx, y.reshape(B * C, D), axis=0)
        return x + upd.reshape(B, S, D)

    x = A_x
    g = _sigmoid((x * gate_w).sum(-1, keepdims=True))
    a = _A_ref(x, A_wqkv, A_w_phi, A_wo)
    b = _B_ref(x, B_w_r, B_w_gate, B_w_up, B_w_down)
    return g * a + (1 - g) * b
```

```python
import sys, subprocess, re
PROM = ('v_add_f32','v_sub_f32','v_subrev_f32','v_mul_f32','v_max_f32','v_min_f32','v_fmac_f32','v_and_b32','v_or_b32','v_xor_b32',
        'v_lshlrev_b32','v_lshrrev_b32','v_ashrrev_i32','v_add_u32','v_sub_u32','v_subrev_u32','v_mov_b32','v_exp_f32','v_rcp_f32','v_log_f32',
        'v_cndmask_b32','v_max_u32','v_min_u32','v_max_i32','v_min_i32','v_cvt_f32_u32','v_cvt_u32_f32','v_not_b32','v_mul_u32_u24')
def is_ins(l):
    t = l.split(';')[0].strip()
    return bool(t) and not t.endswith(':') and not t.startswith('.') and not t.startswith('//')
def sizes(lines):
    src = '\n'.join(l.split(';')[0] for l in lines if is_ins(l) or l.split(';')[0].strip().endswith(':'))
    r = subprocess.run(['llvm-mc', '-triple=amdgcn-amd-amdhsa', '-mcpu=gfx950', '-show-encoding'], input=src, capture_output=True, text=True)
    assert r.returncode == 0, r.stderr[:2000]
    return [m.count(',') + 1 for m in re.findall(r'encoding: \[(.*?)\]', r.stdout)]
def align(text, K=2, lo=None, hi=None, verbose=True):
    L = text.split('\n')
    a = [i for i, l in enumerate(L) if l.strip().endswith('_kernel:')][0]
    b = max(i for i, l in enumerate(L) if l.strip().startswith('s_endpgm'))
    body = L[a + 1:b + 1]
    sz = sizes(body)
    items = []; k = 0
    for l in body:
        if is_ins(l): items.append([l, sz[k]]); k += 1
        else: items.append([l, 0])
    assert k == len(sz)
    out = []; ph = 0; run = []; st = dict(prom=0, nop=0, dead=0, left=0, n8=0); on = lo is None
    def op(l): return l.split(';')[0].split()[0]
    def fix():
        for j in reversed(run):
            o = op(out[j][0])
            if o in PROM or o.startswith('v_cmp_'):
                if o.endswith('_e32') or o.endswith('_e64'): continue
                out[j][0] = out[j][0].replace(o, o + '_e64', 1); out[j][1] = 8; st['prom'] += 1; return True
        return False
    for n, (l, s) in enumerate(items):
        t = l.split(';')[0].strip()
        if s == 0:
            if lo and t == lo + ':': on = True
            if hi and t == hi + ':': on = False
            if t.startswith('.p2align 3'):
                if ph and on and fix(): ph = 0
                ph = 0; run = []
            out.append([l, 0]); continue
        if s % 8 == 0:
            st['n8'] += 1
            if ph and on:
                if fix(): ph = 0
                else:
                    c = 0
                    for l2, s2 in items[n:]:
                        if s2 == 0: continue
                        if s2 % 8: break
                        c += 1
                    if c >= K: out.append(['    s_nop 0', 4]); ph = 0; st['nop'] += 1
            if ph: st['left'] += 1
            out.append([l, s]); run = []
        else:
            out.append([l, s]); run.append(len(out) - 1); ph ^= 4
            if op(l) in ('s_branch', 's_endpgm') :
                if ph and on and n + 1 < len(items): out.append(['    s_nop 0', 4]); ph = 0; st['dead'] += 1
                run = []
    if verbose: print(st)
    return '\n'.join(L[:a + 1] + [x[0] for x in out] + L[b + 1:])
if __name__ == '__main__':
    K = int(sys.argv[3]) if len(sys.argv) > 3 else 2
    lo = sys.argv[4] if len(sys.argv) > 4 and sys.argv[4] != '-' else None
    hi = sys.argv[5] if len(sys.argv) > 5 else None
    open(sys.argv[2], 'w').write(align(open(sys.argv[1]).read(), K, lo, hi))
```

```python
import re

TRANS = ('v_exp_f32', 'v_log_f32', 'v_rcp_f32', 'v_rsq_f32', 'v_sqrt_f32', 'v_sin_f32', 'v_cos_f32')

def _regs(tok):
    tok = tok.strip()
    tok = tok.lstrip('-')
    if tok.startswith('abs(') or tok.startswith('|'):
        tok = tok.replace('abs(', '').replace(')', '').replace('|', '')
    m = re.fullmatch(r'([vsa])(\d+)', tok)
    if m:
        return {(m.group(1), int(m.group(2)))}
    m = re.fullmatch(r'([vsa])\[(\d+):(\d+)\]', tok)
    if m:
        return {(m.group(1), i) for i in range(int(m.group(2)), int(m.group(3)) + 1)}
    if tok in ('vcc', 'vcc_lo', 'vcc_hi'):
        return {('x', 'vcc')}
    if tok in ('exec', 'exec_lo', 'exec_hi'):
        return {('x', 'exec')}
    if tok == 'm0':
        return {('x', 'm0')}
    return set()

def split_ops(s):
    out, depth, cur = [], 0, ''
    for ch in s:
        if ch in '[(':
            depth += 1
        if ch in '])':
            depth -= 1
        if ch == ',' and depth == 0:
            out.append(cur.strip()); cur = ''
        else:
            cur += ch
    if cur.strip():
        out.append(cur.strip())
    return out

class I:
    __slots__ = ('text', 'mn', 'ops', 'wr', 'rd', 'kind', 'srcc', 'passes', 'dpp', 'nop', 'stdata', 'lds_dma', 'label')
    def __init__(self, text):
        self.text = text
        self.label = False
        t = text.split(';')[0].strip()
        self.wr, self.rd = set(), set()
        self.srcc = set(); self.passes = 0; self.dpp = False; self.nop = 1; self.stdata = set(); self.lds_dma = False
        if t.endswith(':') or t == '' or t.startswith('.'):
            self.kind = 'label' if t.endswith(':') else 'none'
            self.mn = ''; self.ops = []
            self.nop = 0
            self.label = t.endswith(':')
            return
        parts = t.split(None, 1)
        mn = parts[0]; self.mn = mn
        rest = parts[1] if len(parts) > 1 else ''
        ops = split_ops(rest)
        mods = ''
        if ops:
            l = ops[-1].split(None, 1)
            if len(l) > 1 and not ops[-1].startswith('vmcnt') and not ops[-1].startswith('lgkmcnt'):
                ops[-1] = l[0]; mods = l[1]
        self.ops = ops
        self.dpp = ('_dpp' in mn) or ('row_' in mods) or ('quad_perm' in mods)
        R = [_regs(o) for o in ops]
        if mn == 's_nop':
            self.kind = 'nop'; self.nop = int(ops[0], 0) + 1
        elif mn.startswith('v_mfma'):
            self.kind = 'mfma'
            self.wr = R[0]; self.rd = R[1] | R[2] | R[3]; self.srcc = R[3]
            self.passes = 8 if '32x32' in mn else 4
        elif mn.startswith('v_'):
            self.kind = 'valu'
            if mn.startswith('v_cmp'):
                self.wr = R[0]; self.rd = set().union(*R[1:])
            elif mn.startswith('v_permlane') and 'swap' in mn:
                self.wr = R[0] | R[1]; self.rd = R[0] | R[1]
            elif mn.startswith('v_readlane') or mn.startswith('v_readfirstlane'):
                self.wr = R[0]; self.rd = set().union(*R[1:])
            elif mn in ('v_add_co_u32', 'v_sub_co_u32', 'v_addc_co_u32'):
                self.wr = R[0] | R[1]; self.rd = set().union(*R[2:])
            else:
                self.wr = R[0]; self.rd = set().union(*R[1:]) if len(R) > 1 else set()
                if mn.startswith('v_fmac') or mn.startswith('v_dot2c') or self.dpp or 'sdwa' in mn or mn.startswith('v_writelane'):
                    self.rd |= R[0]
                if mn.startswith('v_cndmask') and len(ops) == 3:
                    self.rd |= {('x', 'vcc')}
        elif mn.startswith('buffer_') or mn.startswith('global_'):
            self.kind = 'vmem'
            self.lds_dma = (' lds' in (' ' + mods)) or ('load_lds' in mn)
            if 'store' in mn or 'atomic' in mn:
                self.rd = set().union(*R)
                if mn.startswith('buffer_'):
                    data = R[0]
                else:
                    data = R[1]
                if 'x4' in mn or 'x3' in mn:
                    self.stdata = data
                if 'atomic' in mn and 'sc0' in mods:
                    self.wr = data
            elif self.lds_dma:
                self.rd = set().union(*R) | {('x', 'm0')}
            else:
                self.wr = R[0]; self.rd = set().union(*R[1:])
                if 'd16' in mn:
                    self.rd |= R[0]
        elif mn.startswith('ds_'):
            self.kind = 'ds'
            if 'read' in mn or 'permute' in mn or 'swizzle' in mn:
                self.wr = R[0]; self.rd = set().union(*R[1:])
            else:
                self.rd = set().union(*R)
        elif mn.startswith('s_'):
            self.kind = 'salu'
            if mn.startswith('s_cmp') or mn.startswith('s_cbranch') or mn in ('s_branch', 's_barrier', 's_waitcnt', 's_endpgm', 's_sleep', 's_setprio'):
                self.rd = set().union(*R) if R else set()
            else:
                self.wr = R[0] if R else set()
                self.rd = set().union(*R[1:]) if len(R) > 1 else set()
                if 'saveexec' in mn:
                    self.wr |= {('x', 'exec')}
        else:
            raise ValueError('unknown instr ' + text)

def _v(s):
    return {r for r in s if r[0] in 'va'}
def _sg(s):
    return {r for r in s if r[0] == 's' or r == ('x', 'vcc')}

def need(p, c):
    n = 0
    if p.kind == 'valu':
        pw = _v(p.wr)
        if c.kind == 'mfma' and pw & c.rd: n = max(n, 2)
        if c.kind == 'valu':
            if p.mn in TRANS and c.mn not in TRANS and pw & c.rd: n = max(n, 1)
            if c.mn.startswith('v_permlane') and pw & c.rd: n = max(n, 2)
            if c.dpp and pw & c.rd: n = max(n, 2)
            if (c.mn.startswith('v_readlane') or c.mn.startswith('v_readfirstlane')) and pw & c.rd: n = max(n, 1)
            if _sg(p.wr) & c.rd:
                n = max(n, 4 if (c.mn.startswith('v_readlane') or c.mn.startswith('v_writelane')) else 2)
            if ('sdwa' in p.mn or ('op_sel' in p.text and not p.mn.startswith('v_pk_'))) and pw & (c.rd | c.wr): n = max(n, 1)
        if p.mn.startswith('v_dot') and c.kind in ('valu', 'mfma', 'vmem', 'ds') and pw & (c.rd | c.wr):
            if c.mn == p.mn and not (pw & (_regs(c.ops[1]) | _regs(c.ops[2]))): pass
            else: n = max(n, 3)
        if c.kind == 'vmem' and _sg(p.wr) & c.rd: n = max(n, 5)
        if c.kind == 'salu' and _sg(p.wr) & c.rd: n = max(n, 2)
        if c.kind == 'mfma' and ('x', 'exec') in p.wr: n = max(n, 4)
    if p.kind == 'mfma':
        big = 12 if p.passes == 8 else 8
        if c.kind == 'mfma':
            ab = c.rd - c.srcc if c.srcc != c.rd else set()
            ab = _regs(c.ops[1]) | _regs(c.ops[2])
            if p.wr & ab: n = max(n, big)
            if p.wr & c.srcc:
                if p.wr == c.srcc and p.passes == c.passes: n = max(n, 0)
                else: n = max(n, 10 if p.passes == 8 else 6)
            elif p.wr & c.wr:
                n = max(n, 10 if p.passes == 8 else 6)
        elif c.kind in ('valu', 'vmem', 'ds'):
            if p.wr & (c.rd | c.wr): n = max(n, big)
            if c.kind == 'valu' and p.srcc & c.wr: n = max(n, 7 if p.passes == 8 else 3)
    if p.kind == 'salu' and ('x', 'm0') in p.wr and c.kind == 'vmem' and c.lds_dma: n = max(n, 1)
    if p.kind == 'vmem' and p.stdata:
        if c.kind == 'valu' and p.stdata & c.wr: n = max(n, 2)
        elif p.stdata & c.wr: n = max(n, 1)
    return n

class Asm:
    def __init__(self):
        self.lines = []
    def __call__(self, text):
        for ln in text.split('\n'):
            ln = ln.strip()
            if ln:
                self.emit(ln)
    def emit(self, text):
        c = I(text)
        if c.kind not in ('label', 'none', 'nop'):
            dist = 0; req = 0
            for p in reversed(self.lines):
                if dist >= 20: break
                if p.kind not in ('label', 'none', 'nop'):
                    r = need(p, c)
                    if r > dist: req = max(req, r - dist)
                dist += p.nop
            while req > 0:
                k = min(req, 16)
                self.lines.append(I('s_nop %d' % (k - 1)))
                req -= k
        self.lines.append(c)
    def raw(self, text):
        i = I('; raw'); i.text = text; i.kind = 'none'; i.nop = 0
        self.lines.append(i)
    def text(self):
        out = []
        for i in self.lines:
            if i.kind == 'label' or i.text.startswith('.') or i.kind == 'none':
                out.append(i.text)
            else:
                out.append('    ' + i.text)
        return '\n'.join(out) + '\n'

def vr(a, n=1):
    return 'v%d' % a if n == 1 else 'v[%d:%d]' % (a, a + n - 1)
def sr(a, n=1):
    return 's%d' % a if n == 1 else 's[%d:%d]' % (a, a + n - 1)
```

```python
from asmlib import *
WS_BYTES = 32 << 20
OFF_PQ = 0
OFF_KVP = 4 << 20
OFF_ZP = 8 << 20
OFF_KEY = OFF_ZP + (128 << 10)
OFF_G = OFF_KEY + 8192
OFF_SEL = OFF_G + 8192
OFF_FLAG = OFF_SEL + 2048
OFF_GU = OFF_FLAG + 2048
OFF_O = 16 << 20
OFF_OFLAG = (11 << 20) + 65536
OFF_YFLAG = OFF_OFLAG + 1024
OFF_CNT = 11 << 20
OFF_YP = 10 << 20

def srd(A, d, ptr, nbytes):
    A('s_mov_b32 s%d, s%d' % (d, ptr))
    A('s_and_b32 s%d, s%d, 0xffff' % (d + 1, ptr + 1))
    A('s_mov_b32 s%d, %d' % (d + 2, nbytes))
    A('s_mov_b32 s%d, 0x00020000' % (d + 3))

def unpack(A, dst, src, n=8):
    for i in range(n):
        A('v_lshlrev_b32 v%d, 16, v%d' % (dst + 2 * i, src + i))
        A('v_and_b32 v%d, 0xffff0000, v%d' % (dst + 2 * i + 1, src + i))

def wave_sum(A, regs, op='v_add_f32'):
    for mod in ('row_shr:1', 'row_shr:2', 'row_shr:4', 'row_shr:8'):
        for r in regs:
            A('%s_dpp v%d, v%d, v%d %s row_mask:0xf bank_mask:0xf' % (op, r, r, r, mod))
    for r in regs:
        A('%s_dpp v%d, v%d, v%d row_bcast:15 row_mask:0xa bank_mask:0xf' % (op, r, r, r))
    for r in regs:
        A('%s_dpp v%d, v%d, v%d row_bcast:31 row_mask:0xc bank_mask:0xf' % (op, r, r, r))

def softmax_pm(A, P, EP, EM, BP, BM, tmp, sL, sNL, inplace=False):
    t = tmp
    assert t % 2 == 0 and P % 2 == 0 and EP % 2 == 0 and EM % 2 == 0 and sL % 2 == 0 and sNL % 2 == 0
    u = t + 6
    def tree(op3, op2, d):
        A('%s v%d, v%d, v%d, v%d' % (op3, d, P, P + 1, P + 2))
        A('%s v%d, v%d, v%d, v%d' % (op3, d + 1, P + 3, P + 4, P + 5))
        A('%s v%d, v%d, v%d, v%d' % (op3, d + 2, P + 6, P + 7, P + 8))
        A('%s v%d, v%d, v%d, v%d' % (op3, d + 3, P + 9, P + 10, P + 11))
        A('%s v%d, v%d, v%d, v%d' % (op3, d + 4, P + 12, P + 13, P + 14))
        A('%s v%d, v%d, v%d, v%d' % (op3, d, d, d + 1, P + 15))
        A('%s v%d, v%d, v%d, v%d' % (op3, d + 2, d + 2, d + 3, d + 4))
        A('%s v%d, v%d, v%d' % (op2, d, d, d + 2))
    tree('v_max3_f32', 'v_max_f32', t)
    tree('v_min3_f32', 'v_min_f32', u)
    A('v_mov_b32 v%d, v%d' % (t + 1, t))
    A('v_mov_b32 v%d, v%d' % (u + 1, u))
    A('v_permlane32_swap_b32 v%d, v%d' % (t, t + 1))
    A('v_permlane32_swap_b32 v%d, v%d' % (u, u + 1))
    A('v_max_f32 v%d, v%d, v%d' % (t, t, t + 1))
    A('v_min_f32 v%d, v%d, v%d' % (u, u, u + 1))
    A('v_mul_f32 v%d, s%d, v%d' % (t, sNL, t))
    A('v_mul_f32 v%d, s%d, v%d' % (u, sL, u))
    for i in range(8):
        A('v_pk_fma_f32 %s, %s, %s, %s op_sel_hi:[1,0,0]' % (vr(EP + 2 * i, 2), vr(P + 2 * i, 2), sr(sL, 2), vr(t, 2)))
        A('v_pk_fma_f32 %s, %s, %s, %s op_sel_hi:[1,0,0]' % (vr(EM + 2 * i, 2), vr(P + 2 * i, 2), sr(sNL, 2), vr(u, 2)))
    for i in range(16):
        A('v_exp_f32 v%d, v%d' % (EP + i, EP + i))
        A('v_exp_f32 v%d, v%d' % (EM + i, EM + i))
    for (E, d) in ((EP, t), (EM, u)):
        A('v_pk_add_f32 %s, %s, %s' % (vr(d, 2), vr(E, 2), vr(E + 2, 2)))
        A('v_pk_add_f32 %s, %s, %s' % (vr(d + 2, 2), vr(E + 4, 2), vr(E + 6, 2)))
        A('v_pk_add_f32 %s, %s, %s' % (vr(d + 4, 2), vr(E + 8, 2), vr(E + 10, 2)))
    for (E, d) in ((EP, t), (EM, u)):
        A('v_pk_add_f32 %s, %s, %s' % (vr(d, 2), vr(d, 2), vr(E + 12, 2)))
        A('v_pk_add_f32 %s, %s, %s' % (vr(d + 2, 2), vr(d + 2, 2), vr(E + 14, 2)))
    for d in (t, u):
        A('v_pk_add_f32 %s, %s, %s' % (vr(d, 2), vr(d, 2), vr(d + 4, 2)))
    for d in (t, u):
        A('v_pk_add_f32 %s, %s, %s' % (vr(d, 2), vr(d, 2), vr(d + 2, 2)))
    for d in (t, u):
        A('v_add_f32 v%d, v%d, v%d' % (d, d, d + 1))
    A('v_mov_b32 v%d, v%d' % (t + 1, t))
    A('v_mov_b32 v%d, v%d' % (u + 1, u))
    A('v_permlane32_swap_b32 v%d, v%d' % (t, t + 1))
    A('v_permlane32_swap_b32 v%d, v%d' % (u, u + 1))
    A('v_add_f32 v%d, v%d, v%d' % (t, t, t + 1))
    A('v_add_f32 v%d, v%d, v%d' % (u, u, u + 1))
    A('v_rcp_f32 v%d, v%d' % (t, t))
    A('v_rcp_f32 v%d, v%d' % (u, u))
    for i in range(8):
        A('v_pk_mul_f32 %s, %s, %s op_sel_hi:[1,0]' % (vr(EP + 2 * i, 2), vr(EP + 2 * i, 2), vr(t, 2)))
        A('v_pk_mul_f32 %s, %s, %s op_sel_hi:[1,0]' % (vr(EM + 2 * i, 2), vr(EM + 2 * i, 2), vr(u, 2)))
    for i in range(8):
        A('v_cvt_pk_bf16_f32 v%d, v%d, v%d' % (BP + i, EP + 2 * i, EP + 2 * i + 1))
        A('v_cvt_pk_bf16_f32 v%d, v%d, v%d' % (BM + i, EM + 2 * i, EM + 2 * i + 1))


def code_touch(A, tag, start, end, lpw, s_j, sp, v0, v1, s_tmp):
    A('s_getpc_b64 s[%d:%d]' % (sp, sp + 1))
    A('L_pc_%s:' % tag)
    A('s_add_u32 s%d, s%d, %s-L_pc_%s' % (sp, sp, start, tag))
    A('s_addc_u32 s%d, s%d, %s' % (sp + 1, sp + 1, '-1' if tag.startswith('b') else '0'))
    A('s_mul_i32 s%d, s%d, %d' % (s_tmp, s_j, lpw))
    A('v_add_u32 v%d, s%d, v2' % (v0, s_tmp))
    A('v_lshlrev_b32 v%d, 7, v%d' % (v0, v0))
    A('v_cmp_gt_u32 vcc, %s-%s, v%d' % (end, start, v0))
    A('s_and_b32 vcc_lo, vcc_lo, %d' % ((1 << lpw) - 1))
    A('s_mov_b32 vcc_hi, 0')
    A('s_mov_b64 exec, vcc')
    A('s_cbranch_execz L_ct_%s' % tag)
    A('global_load_dword v%d, v%d, s[%d:%d]' % (v1, v0, sp, sp + 1))
    A('L_ct_%s:' % tag)
    A('s_mov_b64 exec, -1')


def xcd_slot(A, tag, srd_, off, shift, lds_addr, v0, v1):
    A('v_mov_b32 v%d, %d' % (v1, lds_addr))
    A('s_cmp_lg_u32 s20, 0')
    A('s_cbranch_scc1 L_xs_%s_w' % tag)
    A('s_getreg_b32 s16, hwreg(HW_REG_XCC_ID)')
    A('s_and_b32 s16, s16, 7')
    A('s_lshr_b32 s17, s2, 6')
    A('s_lshl_b32 s48, s16, 2')
    A('s_add_u32 s48, s48, s17')
    A('s_mov_b32 s49, 0')
    A('s_mov_b64 exec, 1')
    A('L_xs_%s_t:' % tag)
    A('s_lshl_b32 s50, s48, %d' % shift)
    A('s_add_u32 s50, s50, %d' % off)
    A('v_mov_b32 v%d, 1' % v0)
    A('v_mov_b32 v%d, s50' % (v0 + 1))
    A('buffer_atomic_add v%d, v%d, s[%d:%d], 0 offen sc0' % (v0, v0 + 1, srd_, srd_ + 3))
    A('s_waitcnt vmcnt(0)')
    A('v_readfirstlane_b32 s51, v%d' % v0)
    A('s_cmp_lt_u32 s51, 8')
    A('s_cbranch_scc1 L_xs_%s_k' % tag)
    A('s_add_u32 s48, s48, 1')
    A('s_and_b32 s48, s48, 31')
    A('s_add_u32 s49, s49, 1')
    A('s_cmp_lt_u32 s49, 64')
    A('s_cbranch_scc1 L_xs_%s_t' % tag)
    A('s_mov_b32 s51, 0')
    A('L_xs_%s_k:' % tag)
    A('s_lshl_b32 s48, s48, 3')
    A('s_add_u32 s48, s48, s51')
    A('v_mov_b32 v%d, s48' % v0)
    A('ds_write_b32 v%d, v%d' % (v1, v0))
    A('s_mov_b64 exec, -1')
    A('s_waitcnt lgkmcnt(0)')
    A('L_xs_%s_w:' % tag)
    A('s_barrier')
    A('ds_read_b32 v%d, v%d' % (v0, v1))
    A('s_waitcnt lgkmcnt(0)')
    A('v_readfirstlane_b32 s17, v%d' % v0)
    A('s_lshr_b32 s16, s17, 5')
    A('s_and_b32 s17, s17, 31')
```

```python
import re
from al import is_ins, sizes
def layout(text, base, verbose=False):
    L = text.split('\n')
    a = [i for i, l in enumerate(L) if l.strip().endswith('_kernel:')][0]
    b = max(i for i, l in enumerate(L) if l.strip().startswith('s_endpgm'))
    body = L[a + 1:b + 1]
    sz = sizes(body); it = []; k = 0
    for l in body:
        if is_ins(l): it.append((l, sz[k])); k += 1
        else: it.append((l, 0))
    npad = sum(1 for l, s in it if l.startswith(';@PAD'))
    calls = set(l.split()[1] for l, s in it if l.startswith(';@CALL') or l.startswith(';@CCALL'))
    def sim(pads):
        out = []; ad = base; lab = {}; reg = None; st = {}; p = 0; tgt = []; cross = []; last = ''
        for l, s in it:
            t = l.strip()
            if t.startswith(';@PAD'):
                _, lb, off = t.split(); tgt.append((lb, int(off)))
                if pads[p]: out.append('.fill %d, 4, 0xbf800000' % (pads[p] // 4))
                ad += pads[p]; p += 1; continue
            if t.startswith(';@REG'): reg = t.split()[1]; reg = reg if reg in calls else None; continue
            if t.startswith(';@END'): reg = None; continue
            if t.startswith(';@STUB'):
                n = t.split()[1]
                if n in calls:
                    q = st.setdefault(n, []); out.append(('S', n, len(q), 0)); q.append(ad); ad += 4
                continue
            if t.startswith(';@CCALL'): out.append(('D', t.split()[1])); ad += 4; continue
            if t.startswith(';@RET'): out.append('L_rt_%s:' % t.split()[1]); continue
            if t.startswith(';@CALL'): out.append(('C', t.split()[1])); ad += 4; continue
            if s == 0:
                if t.startswith('.p2align 3') and ad % 8: ad += 4
                u = t.split(';')[0].strip()
                if u.endswith(':'): lab[u[:-1]] = ad; last = u[:-1]
                out.append(l); continue
            if (ad + s - 1) // 4096 != (ad - 1) // 4096 or ad % 4096 == 0 and False:
                cross.append((last, ad - lab.get(last, base), t))
            if reg is not None and (ad + s + 4) // 4096 != ad // 4096 and (ad % 4096) != 0 or reg is not None and ad % 4096 == 0:
                q = st.setdefault(reg, [])
                fill = ((-(ad + 4)) % 4096) if ad % 4096 else 0
                out.append(('S', reg, len(q), 1 + fill // 4)); ad += 4 + fill; q.append(ad); ad += 4
                if (ad % 8) and s % 8 == 0: out.append('.fill 1, 4, 0xbf800000'); ad += 4
                out.append('L_sk_%s_%d:' % (reg, len(q) - 1))
            out.append(l); ad += s
        return out, lab, st, tgt, cross, ad
    pads = [0] * npad
    for p in range(npad):
        for _ in range(6):
            out, lab, st, tgt, cross, end = sim(pads)
            lb, off = tgt[p]
            d = (off - lab[lb]) % 4096
            if d == 0: break
            pads[p] = (pads[p] + d) % 4096
        else: print('pad %d not converged' % p)
    out, lab, st, tgt, cross, end = sim(pads)
    res = []
    for o in out:
        if isinstance(o, str): res.append(o); continue
        if o[0] == 'C':
            n = o[1]
            res.append('    s_branch L_st_%s_0' % n if st.get(n) else '    s_nop 0'); res.append('L_rt_%s:' % n)
        elif o[0] == 'D':
            res.append('    s_cbranch_scc1 L_st_%s_0' % o[1] if st.get(o[1]) else '    s_nop 0')
        else:
            _, n, k, inl = o
            if inl:
                res.append('    s_branch L_sk_%s_%d' % (n, k))
                if inl > 1: res.append('.fill %d, 4, 0xbf800000' % (inl - 1))
            res.append('L_st_%s_%d:' % (n, k))
            res.append('    s_branch %s' % ('L_st_%s_%d' % (n, k + 1) if k + 1 < len(st[n]) else 'L_rt_%s' % n))
    if verbose:
        print('pads', pads, 'stubs', {n: [hex(x) for x in q] for n, q in st.items()}, 'end', hex(end))
        for c in cross: print('   cross', c)
    return '\n'.join(L[:a + 1] + res + L[b + 1:])
```

```python
WS_BYTES = 32 << 20
OFF_KEYG = 0
OFF_G = 4096
OFF_OFL = 524288
OFF_DUMMY = 24576
OFF_KVF = 32768
OFF_ZF = 163840
OFF_ZP = 5 << 20
OFF_GU = 327680
OFF_YP = 458752
OFF_KVP = 1 << 20
OFF_O = 8 << 20
OFF_OF2 = 6 << 20
OFF_ST = 12 << 20
```

```python
import sys
from asmlib import *
from common import srd, unpack, wave_sum, softmax_pm
from wsl import *

NAME = 'gated_mix__linear_kernel_hedgehog__moe_arch_mod__prompt'
STAGE = 40960
NS = 3
LDS_TOTAL = 163840
SCR = 40960
P = 155648
P_PHI = P
P_GUS = P + 4096
P_YS = P + 6144
P_FL = P + 7168
P_DONE = P_FL
P_XF = P_FL + 16
P_CNT = P_FL + 32
P_SEL = P_FL + 48
P_KEY = P_FL + 64
P_H1 = P_FL + 80
P_WO = P_FL + 96
P_KS = P_FL + 112
P_GB = P_FL + 128
P_PASS = P_FL + 40
P_WQ = P_FL + 144
P_QD = P_FL + 160
P_QM = P_FL + 176
DQ_X = {11: 122880, 12: 139264, 13: 40960, 14: 81920, 15: 0}
DQ_W = {11: 16384, 12: 57344, 13: 65536, 14: 73728, 15: 24576}
DQ_SCR = 98304
FL0 = 52
SPIN_G = 0x4000
SPIN_L = 0x40000

def ktab(kind):
    if kind == 8: return [[(t & 8) | ((t + f) & 7) for t in range(16)] for f in range(8)]
    if kind == 5: return [[t ^ f for t in range(16)] for f in range(2)]
    if kind == 1: return [[(t & ~3) | ((t + f) & 3) for t in range(16)] for f in range(4)]
    if kind == 2: return [list(range(16))]
    if kind == 4: return [[(t + 4 * f) & 15 for t in range(16)] for f in range(4)]
    raise ValueError

class St:
    def __init__(self, A, on, opt): self.A = A; self.on = on; self.hd = opt.get('hd', -1); self.opt = opt; self.role = 0
    def start(self):
        A = self.A
        if self.hd >= 0:
            A('s_memrealtime s[100:101]'); A('v_mov_b32 v18, 0'); A('s_waitcnt lgkmcnt(0)'); A('v_writelane_b32 v18, s100, 1')
        if not self.on: return
        A('s_memtime s[98:99]'); A('s_memrealtime s[100:101]'); A('v_mov_b32 v18, 0'); A('s_waitcnt lgkmcnt(0)')
        A('v_writelane_b32 v18, s98, 0'); A('v_writelane_b32 v18, s100, 1')
    def pub(self):
        if self.hd < 0: return
        A = self.A
        A('v_readlane_b32 s98, v18, 1'); A('v_mov_b32 v19, s98')
        A('buffer_store_dword v19, v68, s[72:75], 0 offen offset:8 sc1')
    def __call__(self, i):
        A = self.A
        if self.hd == i:
            A('s_memrealtime s[100:101]'); A('s_waitcnt lgkmcnt(0)'); A('v_writelane_b32 v18, s100, 32')
        if not self.on or not (self.opt.get('sm', -1) >> i) & 1: return
        if not (self.opt.get('sr', 3) >> self.role) & 1: return
        if self.role == 0 and not (self.opt.get('sml', -1) >> i) & 1: return
        if self.opt.get('sn', 0) == 1:
            for _ in range(9): A.raw('s_nop 0')
            return
        if self.opt.get('sn', 0) == 2:
            A('s_waitcnt lgkmcnt(0)'); return
        A('s_memtime s[98:99]'); A('s_memrealtime s[100:101]'); A('s_waitcnt lgkmcnt(0)'); A('v_writelane_b32 v18, s98, %d' % (5 + i))
        A('v_writelane_b32 v18, s100, %d' % (32 + i))
    def rt(self, i):
        A = self.A
        if self.hd == i:
            A('s_memrealtime s[100:101]'); A('s_waitcnt lgkmcnt(0)'); A('v_writelane_b32 v18, s100, 32')
        if not self.on or not (self.opt.get('sm', -1) >> i) & 1: return
        A('s_memrealtime s[100:101]'); A('s_waitcnt lgkmcnt(0)'); A('v_writelane_b32 v18, s100, %d' % (32 + i))
    def val(self, i, s):
        if self.hd == 100 + i:
            A = self.A
            A('s_mul_i32 s98, s%d, 100' % s); A('v_writelane_b32 v18, s98, 33')
        if self.on: self.A('v_writelane_b32 v18, s%d, %d' % (s, 5 + i))
    def dump(self):
        A = self.A
        if self.hd >= 0:
            K = self.opt.get('hk', 2); WM = self.opt.get('hwm', 255); WG = self.opt.get('hwg', -1)
            A('s_waitcnt vmcnt(0)')
            A('s_load_dwordx2 s[98:99], s[0:1], 88')
            A('v_mov_b32 v19, 0')
            A('s_waitcnt lgkmcnt(0)')
            srd(A, 72, 98, 256)
            A('buffer_load_dword v19, v19, s[72:75], 0 offen offset:8 sc1')
            A('s_waitcnt vmcnt(0)')
            A('v_readfirstlane_b32 s12, v19')
            if self.hd == 99:
                A('s_memrealtime s[100:101]'); A('s_waitcnt lgkmcnt(0)'); A('v_writelane_b32 v18, s100, 32')
            if self.hd == 98:
                A('v_readlane_b32 s13, v18, 1'); A('v_writelane_b32 v18, s13, 32')
            A('v_readlane_b32 s13, v18, 32')
            A('s_cmp_eq_u32 s13, 0')
            A('s_cselect_b32 s13, s12, s13')
            A('s_sub_u32 s13, s13, s12')
            A('s_add_u32 s13, s13, 200')
            if self.hd >= 100: A('v_readlane_b32 s13, v18, 33')
            A('s_cmp_lt_u32 s13, 8192')
            A('s_cselect_b32 s13, s13, 0')
            A('s_lshl_b32 s12, 1, s20')
            A('s_and_b32 s12, s12, %d' % WM)
            A('s_cselect_b32 s13, s13, 0')
            if WG >= 0:
                A('s_cmp_eq_u32 s2, %d' % WG)
                A('s_cselect_b32 s13, s13, 0')
            A('s_mul_i32 s13, s13, %d' % K)
            A('s_memrealtime s[100:101]'); A('s_waitcnt lgkmcnt(0)')
            A('s_mov_b32 s14, s100')
            A('L_hdspin:')
            A('s_memrealtime s[100:101]'); A('s_waitcnt lgkmcnt(0)')
            A('s_sub_u32 s12, s100, s14')
            A('s_cmp_lt_u32 s12, s13')
            A('s_cbranch_scc1 L_hdspin')
        if not self.on: return
        A('s_waitcnt vmcnt(0)')
        A('s_memtime s[98:99]'); A('s_memrealtime s[100:101]'); A('s_waitcnt lgkmcnt(0)')
        A('v_writelane_b32 v18, s98, 4'); A('v_writelane_b32 v18, s100, 2')
        A('s_getreg_b32 s98, hwreg(HW_REG_XCC_ID)'); A('v_writelane_b32 v18, s98, 3')
        A('s_lshl_b32 s98, s20, 8'); A('s_add_u32 s98, s98, s2'); A('s_lshl_b32 s98, s98, 8')
        A('s_add_u32 s98, s98, %d' % OFF_ST)
        A('v_and_b32 v19, 63, v0'); A('v_lshlrev_b32 v19, 2, v19')
        A('buffer_store_dword v18, v19, s[32:35], s98 offen')

def poison_chain(A, regs, acc):
    r = list(regs)
    A('v_max3_u32 v%d, v%d, v%d, v%d' % (acc, r[0], r[1], r[2])); r = r[3:]
    while len(r) >= 2:
        A('v_max3_u32 v%d, v%d, v%d, v%d' % (acc, acc, r[0], r[1])); r = r[2:]
    if r: A('v_max_u32 v%d, v%d, v%d' % (acc, acc, r[0]))

def tag_bytes(A, d, t):
    A('s_and_b32 s%d, s%d, 0xff' % (d, t))
    A('s_bfe_u32 s%d, s%d, 0x80008' % (d + 1, t))
    A('s_bfe_u32 s%d, s%d, 0x80010' % (d + 2, t))
    A('s_lshr_b32 s%d, s%d, 24' % (d + 3, t))

def phaseb_ids(A, opt):
    if opt.get('bm', 1) == 0:
        A('''s_and_b32 s88, s16, 1
        s_lshl_b32 s88, s88, 1
        s_bfe_u32 s89, s16, 0x10001
        s_add_u32 s88, s88, s89
        s_lshl_b32 s88, s88, 2
        s_and_b32 s89, s17, 3
        s_add_u32 s88, s88, s89
        s_lshr_b32 s89, s16, 2
        s_lshl_b32 s89, s89, 3
        s_lshr_b32 s90, s17, 2
        s_add_u32 s89, s89, s90''')
    else:
        A('''s_and_b32 s88, s16, 1
        s_lshl_b32 s88, s88, 3
        s_lshr_b32 s89, s16, 1
        s_lshl_b32 s89, s89, 1
        s_add_u32 s88, s88, s89
        s_lshr_b32 s89, s17, 4
        s_add_u32 s88, s88, s89
        s_and_b32 s89, s17, 15''')

def gen(A, opt):
    global ZSL, ZFL, OSL, ZP1, ZF1, NR, SCR, R4, HGAP, EBO, OM, ET
    ET = opt.get('et', 0)
    OM = opt.get('om', 0)
    EBO = opt.get('eb', 0) and opt.get('eo', 1)
    R4 = opt.get('r4', 0)
    SCR = 114688 if R4 else 40960
    HGAP = 28 if R4 else 10
    if opt.get('dq', 0) and opt.get('wreg', 1): SCR = 32768; HGAP = 8
    ZP1 = opt.get('zp', 1); ZF1 = opt.get('zf', 1); NR = opt.get('of', 1)
    ZSL = opt.get('zsl', 5); ZFL = 7 if ZF1 else opt.get('zfl', 4); OSL = opt.get('osl', 2)
    S = St(A, opt.get('stamp', 0), opt)
    T = ktab(opt.get('kt', 2)); NPH = len(T)
    A('%s_kernel:' % NAME)
    A('s_cmp_ge_u32 s2, 256')
    A('s_cbranch_scc1 L_end')
    S.start()
    A('s_load_dwordx4 s[4:7], s[0:1], 0')
    A('s_load_dwordx4 s[8:11], s[0:1], 16')
    A('s_load_dwordx16 s[48:63], s[0:1], 40')
    A('''v_lshrrev_b32 v1, 6, v0
    v_and_b32 v2, 63, v0
    v_readfirstlane_b32 s20, v1
    s_and_b32 s16, s2, 7
    s_lshr_b32 s17, s2, 3
    s_and_b32 s18, s16, 1
    s_lshl_b32 s18, s18, 3
    s_and_b32 s19, s17, 7
    s_add_u32 s18, s18, s19
    s_lshr_b32 s19, s16, 1
    s_lshl_b32 s19, s19, 2
    s_lshr_b32 s12, s17, 3
    s_add_u32 s19, s19, s12
    v_lshlrev_b32 v5, 4, v2''')
    if opt.get('jm', 0) == 1:
        A('''s_and_b32 s18, s16, 1
        s_lshl_b32 s18, s18, 3
        s_lshr_b32 s19, s17, 2
        s_add_u32 s18, s18, s19
        s_lshr_b32 s19, s16, 1
        s_lshl_b32 s19, s19, 2
        s_and_b32 s12, s17, 3
        s_add_u32 s19, s19, s12''')
    if opt.get('jm', 0) == 2:
        A('s_xor_b32 s19, s19, 3')
    A('s_cmp_lt_u32 s20, 4')
    A('s_cbranch_scc1 L_compute')
    loader(A, opt, S, T, NPH)
    compute(A, opt, S)
    phaseb(A, opt, S)
    A('L_end:')
    A('s_endpgm')

def loader(A, opt, S, T, NPH):
    SFX = ['']
    A('s_sub_u32 s21, s20, 4')
    if NPH == 8:
        A('''s_and_b32 s23, s19, 3
        s_lshl_b32 s23, s23, 1
        s_add_u32 s23, s23, s18
        s_and_b32 s23, s23, 7''')
    elif NPH > 1:
        A('s_add_u32 s23, s18, s19')
        A('s_and_b32 s23, s23, %d' % (NPH - 1))
    def pack(f, h):
        v = 0
        for i in range(8): v |= T[f][8 * h + i] << (4 * i)
        return v
    A('s_mov_b32 s68, 0x%x' % pack(0, 0)); A('s_mov_b32 s69, 0x%x' % pack(0, 1))
    for c in range(1, NPH):
        A('s_cmp_eq_u32 s23, %d' % c)
        A('s_cselect_b32 s68, 0x%x, s68' % pack(c, 0))
        A('s_cselect_b32 s69, 0x%x, s69' % pack(c, 1))
    xm = opt.get('xm', 1)
    def xor(mul):
        A('s_mul_i32 s12, s12, 0x%x' % mul); A('s_xor_b32 s68, s68, s12'); A('s_xor_b32 s69, s69, s12')
    if xm == 1:
        A('s_lshl_b32 s12, s16, 1'); xor(0x11111111)
    elif xm == 2:
        A('s_lshr_b32 s12, s16, 1'); xor(0x44444444)
    elif xm == 3:
        A('s_and_b32 s12, s16, 1'); xor(0x88888888)
        A('s_bfe_u32 s12, s16, 0x10001'); xor(0x44444444)
    elif xm in (4, 5):
        A('s_lshr_b32 s12, s16, 1'); xor(0x44444444)
        A('s_and_b32 s12, s16, 1'); xor(0x88888888 if xm == 4 else 0x11111111)
    XV = 20; WV = 24
    A('''v_lshrrev_b32 v4, 3, v2
    v_lshlrev_b32 v9, 11, v4
    v_and_b32 v6, 7, v2
    v_lshrrev_b32 v7, 4, v2
    v_xor_b32 v8, v6, v7
    v_lshl_add_u32 v10, v8, 4, v9
    v_xor_b32 v8, 4, v8
    v_lshl_add_u32 v11, v8, 4, v9
    v_mul_u32_u24 v12, 6144, v4
    v_and_b32 v7, 1, v7
    v_lshlrev_b32 v7, 2, v7
    v_xor_b32 v8, v6, v7
    v_lshl_add_u32 v12, v8, 4, v12
    s_lshl_b32 s12, s18, 18
    s_lshl_b32 s13, s21, 16
    s_add_u32 s12, s12, s13''')
    for x in range(4):
        A('s_add_u32 s13, s12, %d' % (x * 16384 - x * 1024))
        A('v_add_u32 v%d, s13, v%d' % (XV + x, 10 + (x & 1)))
    A('s_lshl_b32 s12, s19, 7')
    A('s_mul_i32 s14, s21, 6')
    if R4:
        assert opt.get('m16', 0)
        A('v_xor_b32 v3, 32, v12')
        A('s_mul_i32 s14, s21, 98304')
        A('s_add_u32 s14, s14, s12')
        for c in range(6):
            A('s_add_u32 s13, s14, %d' % ((c >> 1) * 2048 + (c & 1) * (49152 - 1024)))
            A('v_add_u32 v%d, s13, v%d' % (WV + c, 3 if (c & 1) else 12))
    WM = opt.get('wm', 1 if opt.get('dq', 0) else 0); DQ = opt.get('dq', 0)
    WPART = [1, 2, 0]
    if WM:
        assert not R4 and not opt.get('m16', 0)
        A('s_mul_i32 s14, s21, 98304')
        A('s_add_u32 s14, s14, s12')
        for c in range(6):
            A('s_add_u32 s13, s14, %d' % (WPART[c >> 1] * 2048 + (c & 1) * (49152 - 1024)))
            A('v_add_u32 v%d, s13, v12' % (WV + c))
    for c in range(0 if (R4 or WM) else 6):
        A('s_add_u32 s13, s14, %d' % c)
        A('s_and_b32 s15, s13, 7')
        A('s_mul_i32 s15, s15, 49152')
        A('s_lshr_b32 s13, s13, 3')
        A('s_lshl_b32 s13, s13, 11')
        A('s_add_u32 s13, s13, s15')
        A('s_add_u32 s13, s13, s12')
        A('s_sub_u32 s13, s13, %d' % ((c % 3) * 1024))
        if opt.get('m16', 0) and c == 0: A('v_xor_b32 v3, 32, v12')
        A('v_add_u32 v%d, s13, v%d' % (WV + c, 3 if (opt.get('m16', 0) and (c & 1)) else 12))
    A('''s_lshl_b32 s94, s21, 12
    s_mul_i32 s95, s21, 6144
    s_add_u32 s95, s95, 16384''')
    if R4 or WM: A('s_lshl_b32 s95, s21, 11')
    PF0 = opt.get('pf0', 0)
    if PF0:
        A('''v_lshlrev_b32 v112, 2, v4
        v_lshrrev_b32 v112, v112, s68
        v_and_b32 v112, 15, v112
        s_and_b32 s12, s19, 3
        s_lshl_b32 s12, s12, 2
        s_add_u32 s12, s12, s21
        s_lshl_b32 s12, s12, 3
        s_lshl_b32 s13, s18, 7
        s_add_u32 s12, s12, s13
        v_add_u32 v114, s12, v6
        v_lshlrev_b32 v114, 11, v114
        v_lshl_add_u32 v114, v112, 7, v114
        s_and_b32 s12, s18, 7
        s_lshl_b32 s12, s12, 2
        s_add_u32 s12, s12, s21
        s_mul_i32 s12, s12, 6
        v_add_u32 v113, s12, v6
        v_lshrrev_b32 v115, 6, v113
        v_and_b32 v113, 63, v113
        v_lshl_add_u32 v113, v112, 6, v113
        v_mul_u32_u24 v113, 6144, v113
        v_lshl_add_u32 v115, v115, 11, v113
        s_lshl_b32 s12, s19, 7
        v_add_u32 v115, s12, v115''')
    A('s_waitcnt lgkmcnt(0)')
    srd(A, 24, 4, 4 << 20)
    srd(A, 28, 6, 6 << 20)
    S(0)
    Q = []
    def vm(text, tag):
        A(text); Q.append(tag)
    def wait_for(tag):
        idx = [i for i, t in enumerate(Q) if t == tag]
        if not idx: return
        last = max(idx)
        n = len([t for t in Q[last + 1:] if not t.startswith('?')])
        assert n < 64
        A('s_waitcnt vmcnt(%d)' % n)
        del Q[:last + 1]
    FQ = []
    FI = opt.get('fi', 0); FE = opt.get('fe', 10); FM = opt.get('fm', 1 if FI else 0)
    def fill(n):
        while FQ and n > 0:
            k, f = FQ.pop(0); f(); n -= k
    def fq_text(lines):
        for x in lines: FQ.append((len(x) if isinstance(x, list) else 1, (lambda x=x: A('\n'.join(x) if isinstance(x, list) else x))))
    DEFER = []
    NF_ = [0]
    def issue(st, lo=0, hi=10):
        if lo == 0 and hi > 0:
            A('s_bfe_u32 s91, s%d, 0x%x' % (68 + (st >> 3), 0x40000 | (4 * (st & 7))))
            A('s_lshl_b32 s92, s91, 7')
            A('s_mul_i32 s93, s91, 393216')
        base = (st % NS) * STAGE
        if R4:
            for i in range(lo, hi):
                if i == 0 or (i == lo and i < 4): A('s_add_u32 m0, s94, %d' % ((st & 3) * 16384))
                if i >= 4 and (i == lo or (i & 1) == 0): A('s_add_u32 m0, s95, %d' % (65536 + ((3 * st + ((i - 4) >> 1)) % 11) * 8192))
                if i < 4: vm('buffer_load_dwordx4 v%d, s[24:27], s92 offen offset:%d lds' % (XV + i, i * 1024), 'S%d' % st)
                else: vm('buffer_load_dwordx4 v%d, s[28:31], s93 offen offset:%d lds' % (WV + i - 4, (i & 1) * 1024), 'S%d' % st)
                if NF_[0] < 10: fill(FI)
                NF_[0] += 1
            return
        if WM:
            if st >= 16 - DQ: hi = min(hi, 8)
            for i in range(lo, hi):
                if i == 0 or (i == lo and i < 4): A('s_add_u32 m0, s94, %d' % (DQ_X[st] if (st >= 16 - DQ and st in DQ_X) else base))
                if i >= 4 and (i == lo or (i & 1) == 0): A('s_add_u32 m0, s95, %d' % (base + 16384 + WPART[(i - 4) >> 1] * 8192))
                if i < 4: vm('buffer_load_dwordx4 v%d, s[24:27], s92 offen offset:%d lds' % (XV + i, i * 1024), 'S%d' % st)
                else: vm('buffer_load_dwordx4 v%d, s[28:31], s93 offen offset:%d lds' % (WV + i - 4, (i & 1) * 1024), 'S%d' % st)
                fill(FI + (FI if (st >= 16 - DQ and i >= 6) else 0))
            return
        for i in range(lo, hi):
            if i == 0 or (i == lo and i < 4): A('s_add_u32 m0, s94, %d' % base)
            if i == 4 or (i == lo and 4 <= i < 7): A('s_add_u32 m0, s95, %d' % base)
            if i == 7 or (i == lo and i >= 7): A('s_add_u32 m0, s95, %d' % (base + 3072))
            if i < 4: vm('buffer_load_dwordx4 v%d, s[24:27], s92 offen offset:%d lds' % (XV + i, i * 1024), 'S%d' % st)
            else: vm('buffer_load_dwordx4 v%d, s[28:31], s93 offen offset:%d lds' % (WV + i - 4, ((i - 4) % 3) * 1024), 'S%d' % st)
            fill(FI)
    PRE = opt.get('pre', 6)
    def pf0(lo, hi):
        if hi <= lo: return
        mx = sum(0xff << (8 * k) for k in range(lo, hi)); mw = sum(0x3f << (8 * k) for k in range(lo, hi))
        A('s_mov_b32 exec_lo, 0x%x' % (mw & 0xffffffff)); A('s_mov_b32 exec_hi, 0x%x' % (mw >> 32))
        vm('buffer_load_dword v117, v115, s[28:31], 0 offen', 'PF')
        A('s_mov_b32 exec_lo, 0x%x' % (mx & 0xffffffff)); A('s_mov_b32 exec_hi, 0x%x' % (mx >> 32))
        vm('buffer_load_dword v116, v114, s[24:27], 0 offen', 'PF')
        A('s_mov_b64 exec, -1')
    PFA = opt.get('pfa', PF0)
    if PF0: pf0(opt.get('pfl', 0), PFA)
    issue(0)
    if PF0: pf0(max(PFA, opt.get('pfl', 0)), PF0)
    issue(1, 0, PRE)
    srd(A, 32, 62, WS_BYTES)
    srd(A, 36, 10, 2 << 20)
    srd(A, 40, 50, 1024 * 7168)
    srd(A, 44, 52, 1024 * 7168)
    srd(A, 64, 54, 3584 * 2048)
    srd(A, 72, 60, 256)
    srd(A, 76, 8, 65536)
    srd(A, 80, 48, 2048)
    srd(A, 84, 56, 2048)
    if opt.get('mm', 1):
        A('''s_cmp_gt_u32 s19, 3
        s_subb_u32 s10, s19, 0
        s_cmp_gt_u32 s19, 11
        s_subb_u32 s10, s10, 0
        s_lshl_b32 s10, s10, 4
        s_add_u32 s10, s10, s18
        s_and_b32 s12, s19, 7
        s_cmp_eq_u32 s12, 3
        s_cselect_b32 s10, 224, s10
        s_xor_b32 s11, s18, %d
        s_lshl_b32 s11, s11, 4
        s_add_u32 s11, s11, s19''' % opt.get('dx', 2))
        if opt.get('dm', 1):
            A('s_lshl_b32 s11, s19, 4'); A('s_add_u32 s11, s11, s18')
    else:
        A('s_mov_b32 s10, s2'); A('s_mov_b32 s11, s2')
    A('s_cmp_lt_u32 s10, 224')
    A('s_cselect_b32 s42, s42, 0')
    A('s_cselect_b32 s46, s46, 0')
    phaseb_ids(A, opt)
    A('''v_mov_b32 v13, 0
    v_mul_u32_u24 v30, 57344, v4
    v_lshl_add_u32 v30, v6, 4, v30        ; gate/up lane offset
    v_lshl_add_u32 v31, v6, 4, v9         ; down lane offset
    v_lshl_add_u32 v33, v8, 4, v9
    s_lshl_b32 s12, s89, 7
    v_add_u32 v33, s12, v33
    v_lshlrev_b32 v34, 4, v4
    s_and_b32 s12, s10, 3
    s_lshl_b32 s12, s12, 8
    s_lshl_b32 s13, s21, 6
    s_add_u32 s70, s12, s13               ; gate/up row0 = ks*256 + lw*64
    s_mul_i32 s71, s70, 7168
    s_lshr_b32 s12, s10, 2
    s_lshl_b32 s12, s12, 7
    s_add_u32 s71, s71, s12               ; gate/up soffset
    s_and_b32 s12, s11, 15
    s_mul_i32 s12, s12, 224
    s_mul_i32 s13, s21, 56
    s_add_u32 s96, s12, s13               ; down row0 f0
    s_lshl_b32 s97, s96, 11
    s_lshr_b32 s12, s11, 4
    s_lshl_b32 s12, s12, 7
    s_add_u32 s97, s97, s12               ; down soffset
    s_lshl_b32 s22, s18, 7
    s_lshl_b32 s12, s19, 3
    s_add_u32 s22, s22, s12
    s_lshl_b32 s12, s21, 1
    s_add_u32 s22, s22, s12               ; R0''')

    A('s_xor_b32 s9, s71, %d' % (opt.get('gs', 0) << 7))
    if opt.get('p3', 0):
        A('''s_and_b32 s12, s18, 7
        s_lshl_b32 s12, s12, 2
        s_add_u32 s12, s12, s21
        s_mul_i32 s12, s12, 6
        v_add_u32 v32, s12, v2
        v_lshrrev_b32 v11, 6, v32
        v_and_b32 v32, 63, v32
        v_mul_u32_u24 v32, 6144, v32
        v_lshl_add_u32 v32, v11, 11, v32
        s_lshl_b32 s12, s19, 7
        v_add_u32 v32, s12, v32''')
    if opt.get('pw', 0):
        A('''s_lshl_b32 s12, s2, 6
        s_lshl_b32 s13, s21, 4
        s_add_u32 s12, s12, s13
        v_add_u32 v10, s12, v2
        v_lshlrev_b32 v10, 7, v10
        s_lshl_b32 s12, s17, 6
        s_add_u32 s12, s12, s13
        s_sub_u32 s12, s12, 16
        v_add_u32 v11, s12, v2
        v_and_b32 v12, 1, v11
        v_lshrrev_b32 v11, 1, v11
        v_lshlrev_b32 v11, 11, v11
        v_lshl_add_u32 v11, v12, 10, v11
        v_add_u32 v11, 384, v11
        v_cmp_gt_u32 vcc, 16, v2
        v_cndmask_b32 v10, v11, v10, vcc''')
    TW = opt.get('tw', 0)
    def a_tw():
        if TW & 1:
            A('v_lshlrev_b32 v118, 21, v2'); A('v_add_u32 v118, 0x5f00, v118')
            A('s_mov_b64 exec, 0x7f')
            vm('buffer_load_dword v119, v118, s[32:35], 0 offen sc1', 'TW')
        if TW & 2:
            A('s_mov_b32 exec_lo, 1'); A('s_mov_b32 exec_hi, 0x01000000')
            vm('buffer_load_dword v119, v30, s[40:43], s71 offen nt', 'TW')
            vm('buffer_load_dword v119, v30, s[44:47], s9 offen nt', 'TW')
            vm('buffer_load_dword v119, v31, s[64:67], s97 offen nt', 'TW')
        if TW & 4:
            A('v_lshlrev_b32 v118, 20, v2')
            A('s_mov_b64 exec, 0x3')
            vm('buffer_load_dword v119, v118, s[36:39], 0 offen', 'TW')
            A('s_mov_b64 exec, 0x3f')
            vm('buffer_load_dword v119, v118, s[28:31], 0 offen', 'TW')
            A('s_mov_b64 exec, 1')
            A('s_lshl_b32 s12, s88, 18')
            vm('buffer_load_dword v119, v13, s[24:27], s12 offen', 'TW')
        if TW & 8:
            A('s_mov_b64 exec, 1')
            vm('buffer_load_dword v119, v13, s[72:75], 0 offen sc1', 'TW')
            vm('buffer_load_dword v119, v13, s[76:79], 0 offen', 'TW')
            vm('buffer_load_dword v119, v13, s[80:83], 0 offen', 'TW')
            vm('buffer_load_dword v119, v13, s[84:87], 0 offen', 'TW')
        if TW & 16:
            A('s_mov_b64 exec, 1')
            A('s_mov_b32 s4, s58'); A('s_mov_b32 s5, s59'); A('s_mov_b32 s6, %d' % (4 << 20)); A('s_mov_b32 s7, 0x20000')
            A('s_lshl_b32 s12, s88, 18')
            vm('buffer_load_dword v119, v13, s[4:7], s12 offen sc1', 'TW')
        A('s_mov_b64 exec, -1')
    if TW and opt.get('t_tw', 0) == 0: a_tw()
    def a_wphi():
        A('s_lshl_b32 s12, s19, 2'); A('s_add_u32 s12, s12, s21'); A('s_lshl_b32 s12, s12, 10')
        A('s_lshl_b32 s13, s21, 10'); A('s_add_u32 m0, s13, %d' % P_PHI)
        vm('buffer_load_dwordx4 v5, s[76:79], s12 offen lds', 'PHI')
    def a_rgload():
        A('s_lshl_b32 s12, s22, 11')
        for i in range(4):
            vm('buffer_load_dwordx4 %s, v5, s[24:27], s12 offen offset:%d' % (vr(40 + 4 * i, 4), i * 1024), 'RG')
        for i in range(2):
            vm('buffer_load_dwordx4 %s, v5, s[80:83], 0 offen offset:%d' % (vr(56 + 4 * i, 4), i * 1024), 'RG')
        for i in range(2):
            vm('buffer_load_dwordx4 %s, v5, s[84:87], 0 offen offset:%d' % (vr(64 + 4 * i, 4), i * 1024), 'RG')
    def a_tag():
        vm('buffer_load_dword v15, v13, s[72:75], 0 offen offset:4 sc1', 'TG')
    class Rec:
        def __init__(self): self.l = []
        def __call__(self, t): self.l += [x.strip() for x in t.split('\n') if x.strip()]
    def rg_code():
        R = Rec()
        for row in range(2):
            xr = 40 + row * 8
            ar, ag = 90 + row * 2, 91 + row * 2
            if row == 0:
                for i in range(8):
                    R('v_lshlrev_b32 v%d, 16, v%d' % (72 + 2 * i, 64 + i))
                    R('v_and_b32 v%d, 0xffff0000, v%d' % (73 + 2 * i, 64 + i))
            R('v_mov_b32 v%d, 0' % ar)
            R('v_mov_b32 v%d, 0' % ag)
            for i in range(8):
                R('v_dot2_f32_bf16 v%d, v%d, v%d, v%d' % (ar, xr + i, 56 + i, ar))
                R('v_lshlrev_b32 v94, 16, v%d' % (xr + i))
                R('v_and_b32 v95, 0xffff0000, v%d' % (xr + i))
                R('v_mul_f32 v94, v94, v%d' % (72 + 2 * i))
                R('v_mul_f32 v95, v95, v%d' % (73 + 2 * i))
                R('v_cvt_pk_bf16_f32 v94, v94, v95')
                R('v_lshlrev_b32 v95, 16, v94')
                R('v_and_b32 v94, 0xffff0000, v94')
                R('v_add_f32 v%d, v%d, v95' % (ag, ag))
                R('v_add_f32 v%d, v%d, v94' % (ag, ag))
        wave_sum(R, [90, 91, 92, 93])
        for row in range(2):
            ar, ag = 90 + row * 2, 91 + row * 2
            R('v_cvt_pk_bf16_f32 v94, v%d, v%d' % (ar, ag))
            R('v_and_b32 v95, 0xffff, v94')
            R('v_and_b32 v96, 0x8000, v94')
            R('v_cmp_ne_u32 vcc, 0, v96')
            R('v_mov_b32 v97, 0x8000')
            R('v_mov_b32 v98, 0xffff')
            R('v_cndmask_b32 v96, v97, v98, vcc')
            R('v_xor_b32 v95, v95, v96')
            R('s_sub_u32 s12, %d, s22' % (2047 - row))
            R('v_lshlrev_b32 v95, 11, v95')
            R('v_or_b32 v%d, s12, v95' % (100 + row))
            R('v_and_b32 v94, 0xffff0000, v94')
            R('v_mul_f32 v94, 0xbfb8aa3b, v94')
            R('v_exp_f32 v94, v94')
            R('v_add_f32 v94, 1.0, v94')
            R('v_rcp_f32 v94, v94')
            R('v_cvt_pk_bf16_f32 v94, v94, v94')
            R('v_lshlrev_b32 v%d, 16, v94' % (102 + row))
        R('v_max_u32 v100, v100, v101')
        return R.l
    def rg_code2():
        R = []
        R.append('s_mov_b32 s8, 0x3f803f80')
        for i in range(8):
            R.append('v_and_b32 v%d, 0xffff, v%d' % (72 + 2 * i, 64 + i))
            R.append('v_and_b32 v%d, 0xffff0000, v%d' % (73 + 2 * i, 64 + i))
        T = 112
        for b in range(2):
            for j in range(4):
                i = 4 * b + j
                for row in range(2):
                    xr = 40 + row * 8 + i
                    R.append('v_dot2_f32_bf16 v%d, v%d, v%d, 0' % (T + 8 * row + 2 * j, xr, 72 + 2 * i))
                    R.append('v_dot2_f32_bf16 v%d, v%d, v%d, 0' % (T + 8 * row + 2 * j + 1, xr, 73 + 2 * i))
            for j in range(4):
                i = 4 * b + j
                for row in range(2):
                    xr = 40 + row * 8 + i; ar = 90 + row * 2
                    R.append('v_dot2_f32_bf16 v%d, v%d, v%d, %s' % (ar, xr, 56 + i, '0' if i == 0 else 'v%d' % ar))
            for j in range(4):
                for row in range(2):
                    t = T + 8 * row + 2 * j
                    R.append('v_cvt_pk_bf16_f32 v%d, v%d, v%d' % (t, t, t + 1))
            for j in range(4):
                for row in range(2):
                    t = T + 8 * row + 2 * j; ag = 91 + row * 2
                    R.append('v_dot2_f32_bf16 v%d, v%d, s8, %s' % (ag, t, '0' if (b == 0 and j == 0) else 'v%d' % ag))
        W = Rec(); wave_sum(W, [90, 91, 92, 93]); R += W.l
        R += ['v_mov_b32 v97, 0x8000', 'v_mov_b32 v98, 0xffff']
        for row in range(2): R.append('v_cvt_pk_bf16_f32 v%d, v%d, v%d' % (94 + row * 10, 90 + row * 2, 91 + row * 2))
        for row in range(2):
            a = 94 + row * 10
            R.append('v_and_b32 v%d, 0xffff, v%d' % (a + 1, a))
            R.append('v_and_b32 v%d, 0x8000, v%d' % (a + 2, a))
            R.append('v_and_b32 v%d, 0xffff0000, v%d' % (a, a))
            R.append('v_cmp_ne_u32 vcc, 0, v%d' % (a + 2))
            R.append('v_mul_f32 v%d, 0xbfb8aa3b, v%d' % (a, a))
            R.append('v_exp_f32 v%d, v%d' % (a, a))
            R.append('v_cndmask_b32 v%d, v97, v98, vcc' % (a + 2))
            R.append('v_xor_b32 v%d, v%d, v%d' % (a + 1, a + 1, a + 2))
            R.append('v_add_f32 v%d, 1.0, v%d' % (a, a))
            R.append('v_lshlrev_b32 v%d, 11, v%d' % (a + 1, a + 1))
            R.append('v_rcp_f32 v%d, v%d' % (a, a))
            R.append(['s_sub_u32 s12, %d, s22' % (2047 - row), 'v_or_b32 v%d, s12, v%d' % (100 + row, a + 1)])
            R.append('v_cvt_pk_bf16_f32 v%d, v%d, v%d' % (a, a, a))
            R.append('v_lshlrev_b32 v%d, 16, v%d' % (102 + row, a))
        R.append('v_max_u32 v100, v100, v101')
        return R
    def rg_code3():
        R = []
        R.append('s_mov_b32 s8, 0xffff0000')
        T = 112
        for i in range(8):
            wl, wh, gl, gh = 72, 56 + i, 73, 64 + i
            R.append('v_lshlrev_b32 v%d, 16, v%d' % (wl, 56 + i))
            R.append('v_and_b32 v%d, s8, v%d' % (wh, 56 + i))
            R.append('v_lshlrev_b32 v%d, 16, v%d' % (gl, 64 + i))
            R.append('v_and_b32 v%d, s8, v%d' % (gh, 64 + i))
            for row in range(2):
                xr = 40 + row * 8 + i; t = T + 4 * row
                R.append('v_lshlrev_b32 v%d, 16, v%d' % (t, xr))
                R.append('v_and_b32 v%d, s8, v%d' % (xr, xr))
            for row in range(2):
                xr = 40 + row * 8 + i; t = T + 4 * row; ar = 90 + row * 2
                R.append('v_mul_f32 v%d, v%d, v%d' % (t + 1, t, gl))
                R.append('v_mul_f32 v%d, v%d, v%d' % (t + 2, xr, gh))
                R.append(('v_mul_f32 v%d, v%d, v%d' if i == 0 else 'v_fmac_f32 v%d, v%d, v%d') % (ar, t, wl))
            for row in range(2):
                xr = 40 + row * 8 + i; t = T + 4 * row; ar = 90 + row * 2
                R.append('v_cvt_pk_bf16_f32 v%d, 0, v%d' % (t + 1, t + 1))
                R.append('v_cvt_pk_bf16_f32 v%d, 0, v%d' % (t + 2, t + 2))
                R.append('v_fmac_f32 v%d, v%d, v%d' % (ar, xr, wh))
            for row in range(2):
                t = T + 4 * row; ag = 91 + row * 2
                if i == 0: R.append('v_add_f32 v%d, v%d, v%d' % (ag, t + 1, t + 2))
                else:
                    R.append('v_add_f32 v%d, v%d, v%d' % (ag, ag, t + 1))
            if i:
                for row in range(2):
                    t = T + 4 * row; ag = 91 + row * 2
                    R.append('v_add_f32 v%d, v%d, v%d' % (ag, ag, t + 2))
        C = rg_code2()
        k = [j for j, x in enumerate(C) if isinstance(x, str) and '_dpp' in x][0]
        return R + C[k:]
    def rg_fin():
        A('s_lshl_b32 s12, s22, 2'); A('s_add_u32 s12, s12, %d' % OFF_G)
        A('s_lshl_b32 s13, s21, 2'); A('s_add_u32 s13, s13, %d' % P_KEY)
        A('v_mov_b32 v14, s13')
        A('s_mov_b32 exec_lo, 0'); A('s_mov_b32 exec_hi, 0x80000000')
        vm('buffer_store_dwordx2 v[102:103], v13, s[32:35], s12 offen sc1', 'G')
        A('ds_write_b32 v14, v100')
        A('s_mov_b64 exec, -1')
        A('s_waitcnt lgkmcnt(0)')
    def f_rg():
        FQ.append((1, lambda: wait_for('RG')))
        fq_text(rg_code3())
        FQ.append((8, rg_fin))
    RGL = rg_code()
    NP = opt.get('np', 2)
    def a_rgc(k):
        def f():
            wait_for('RG')
            per = (len(RGL) + NP - 1) // NP
            for x in RGL[k * per:(k + 1) * per]: A(x)
            if k == NP - 1:
                A('s_lshl_b32 s12, s22, 2'); A('s_add_u32 s12, s12, %d' % OFF_G)
                A('s_lshl_b32 s13, s21, 2'); A('s_add_u32 s13, s13, %d' % P_KEY)
                A('v_mov_b32 v14, s13')
                A('s_mov_b32 exec_lo, 0'); A('s_mov_b32 exec_hi, 0x80000000')
                vm('buffer_store_dwordx2 v[102:103], v13, s[32:35], s12 offen sc1', 'G')
                A('ds_write_b32 v14, v100')
                A('s_mov_b64 exec, -1')
                A('s_waitcnt lgkmcnt(0)')
        return f
    def a_tagchk():
        wait_for('TG')
        A('s_mov_b32 s13, 0')
        A('L_tagchk%s:' % SFX[0])
        A('v_readfirstlane_b32 s23, v15')
        A('s_cmp_lg_u32 s23, 0')
        A('s_cbranch_scc1 L_tagok%s' % SFX[0])
        A('s_add_u32 s13, s13, 1')
        A('s_cmp_ge_u32 s13, %d' % SPIN_G)
        A('s_cbranch_scc1 L_tagok%s' % SFX[0])
        A('buffer_load_dword v15, v13, s[72:75], 0 offen offset:4 sc1')
        A('s_waitcnt vmcnt(0)')
        A('s_branch L_tagchk%s' % SFX[0])
        A('L_tagok%s:' % SFX[0])
        S.val(20, 13)
        tag_bytes(A, 76, 23)
        A('v_and_b32 v35, 3, v2')
        A('v_lshlrev_b32 v35, 3, v35')
        A('v_bfe_u32 v35, s23, v35, 8')
    def a_clr():
        A('s_cmp_lg_u32 s21, 0')
        A('s_cbranch_scc1 L_noclr%s' % SFX[0])
        for r in range(104, 108): A('v_mov_b32 v%d, -1' % r)
        A('''s_lshl_b32 s12, s19, 13
        s_lshl_b32 s13, s18, 9
        s_add_u32 s12, s12, s13
        s_add_u32 s12, s12, %d
        s_lshl_b32 s13, s19, %d
        s_lshl_b32 s90, s18, %d
        s_add_u32 s13, s13, s90
        s_add_u32 s13, s13, %d''' % (OFF_KVF, 4 + ZFL, ZFL, OFF_ZF))
        A('s_mov_b32 exec_hi, 0')
        vm('buffer_store_dwordx4 v[104:107], v5, s[32:35], s12 offen sc1', '?C')
        A('s_mov_b32 exec_lo, %d' % (255 if ZF1 else 1))
        vm('buffer_store_dwordx4 v[104:107], v5, s[32:35], s13 offen sc1', '?C')
        A('s_mov_b64 exec, -1')
        A('L_noclr%s:' % SFX[0])
    def a_pub():
        wait_for('G'); wait_for('?C')
        A('s_cmp_lg_u32 s21, 0')
        A('s_cbranch_scc1 L_nopub%s' % SFX[0])
        A('v_mov_b32 v14, %d' % P_KEY)
        A('ds_read_b128 v[104:107], v14')
        A('s_lshl_b32 s12, s2, 3'); A('s_add_u32 s12, s12, %d' % OFF_KEYG)
        A('s_waitcnt lgkmcnt(0)')
        A('v_max3_u32 v104, v104, v105, v106')
        A('v_max_u32 v104, v104, v107')
        A('v_mov_b32 v105, s23')
        A('s_mov_b64 exec, 1')
        vm('buffer_store_dwordx2 v[104:105], v13, s[32:35], s12 offen sc1', '?K')
        A('s_mov_b64 exec, -1')
        A('L_nopub%s:' % SFX[0])
    PW = opt.get('pw', 0); P3 = opt.get('p3', 0); GS = opt.get('gs', 0)
    def a_moe(mat, lo=0, hi=8):
        def f():
            if P3:
                A('s_cmp_ge_u32 s10, 224')
                A('s_cbranch_scc1 L_p3%d%s' % (mat, SFX[0]))
            for i in range(lo, hi):
                A('s_add_u32 s12, s%d, %d' % (9 if (GS and mat) else 71, i * 7168))
                vm('buffer_load_dwordx4 %s, v30, s[%d:%d], s12 offen nt' % (vr(128 + mat * 32 + i * 4, 4), 40 + 4 * mat, 43 + 4 * mat), 'M%d' % mat)
            if P3:
                A('s_branch L_p3e%d%s' % (mat, SFX[0]))
                A('L_p3%d%s:' % (mat, SFX[0]))
                A('s_mov_b64 exec, 63')
                for i in range(8):
                    st = min(15, P3 + 8 * mat + i)
                    if P3 + 8 * mat + i == 16: A('s_mov_b64 exec, 1')
                    A('s_bfe_u32 s12, s%d, 0x%x' % (68 + (st >> 3), 0x40000 | (4 * (st & 7))))
                    A('s_mul_i32 s12, s12, 393216')
                    A('buffer_load_dword v%d, v32, s[28:31], s12 offen' % (128 + mat * 32 + i * 4))
                A('s_mov_b64 exec, -1')
                A('L_p3e%d%s:' % (mat, SFX[0]))
            if PW and mat == 1: a_pw('M1')
        return f
    def a_pw(tag):
        A('s_mov_b32 exec_lo, 0x%x' % ((0xffff if PW & 1 else 0) | (0xffff0000 if PW & 2 else 0))); A('s_mov_b32 exec_hi, 0')
        vm('buffer_load_dword v19, v10, s[36:39], 0 offen', tag)
        A('s_mov_b64 exec, -1')
    def a_down():
        for i in range(7):
            A('s_add_u32 s12, s97, %d' % (i * 16384))
            vm('buffer_load_dwordx4 %s, v31, s[64:67], s12 offen nt' % vr(192 + i * 4, 4), 'MD')
    PG = 104
    def poll_issue(track):
        A('s_mov_b32 s12, %d' % OFF_KEYG)
        for i in range(2):
            t = 'buffer_load_dwordx4 %s, v5, s[32:35], s12 offen offset:%d sc1' % (vr(PG + i * 4, 4), i * 1024)
            if track: vm(t, 'P')
            else: A(t)
    def a_poll(): poll_issue(True)
    def a_eval():
        wait_for('P')
        A('s_mov_b32 s13, 0')
        A('L_keychk%s:' % SFX[0])
        for k in range(4):
            A('v_xor_b32 v%d, s23, v%d' % (PG + 2 * k + 1, PG + 2 * k + 1))
        A('v_or3_b32 v%d, v%d, v%d, v%d' % (PG + 1, PG + 1, PG + 3, PG + 5))
        A('v_or_b32 v%d, v%d, v%d' % (PG + 1, PG + 1, PG + 7))
        A('v_cmp_ne_u32 vcc, 0, v%d' % (PG + 1))
        A('s_cbranch_vccz L_keyok%s' % SFX[0])
        A('s_add_u32 s13, s13, 1')
        A('s_cmp_ge_u32 s13, %d' % SPIN_G)
        A('s_cbranch_scc1 L_keyok%s' % SFX[0])
        poll_issue(False)
        A('s_waitcnt vmcnt(0)')
        A('s_branch L_keychk%s' % SFX[0])
        A('L_keyok%s:' % SFX[0])
        S.val(21, 13)
        A('v_max3_u32 v%d, v%d, v%d, v%d' % (PG, PG, PG + 2, PG + 4))
        A('v_max_u32 v%d, v%d, v%d' % (PG, PG, PG + 6))
        wave_sum(A, [PG], op='v_max_u32')
        A('v_readlane_b32 s14, v%d, 63' % PG)
        A('s_and_b32 s15, s14, 2047')
        A('s_sub_u32 s15, 2047, s15')
        A('s_lshl_b32 s12, s15, 11')
        A('s_lshl_b32 s13, s70, 1')
        A('s_add_u32 s12, s12, s13')
        vm('buffer_load_dwordx4 v[36:39], v34, s[24:27], s12 offen', 'XS')
        A('''s_lshr_b32 s12, s14, 11
        s_and_b32 s13, s12, 0x8000
        s_cmp_lg_u32 s13, 0
        s_mov_b32 s13, 0xffff
        s_cselect_b32 s13, 0x8000, s13
        s_xor_b32 s12, s12, s13
        s_lshl_b32 s12, s12, 16
        v_mov_b32 v105, s12
        v_mul_f32 v105, 0xbfb8aa3b, v105
        v_exp_f32 v105, v105
        v_add_f32 v105, 1.0, v105
        v_rcp_f32 v105, v105
        v_cvt_pk_bf16_f32 v105, v105, v105
        v_lshlrev_b32 v105, 16, v105
        v_readfirstlane_b32 s14, v105
        s_add_u32 s12, s15, 1
        v_mov_b32 v104, s12
        v_mov_b32 v106, s23
        v_mov_b32 v14, %d
        s_mov_b64 exec, 1
        ds_write_b96 v14, v[104:106]
        s_mov_b64 exec, -1
        s_waitcnt lgkmcnt(0)''' % P_SEL)
    def f_eval():
        sf = SFX[0]
        def chk():
            for k in range(4):
                A('v_xor_b32 v%d, s23, v%d' % (PG + 2 * k + 1, PG + 2 * k + 1))
            A('v_or3_b32 v%d, v%d, v%d, v%d' % (PG + 1, PG + 1, PG + 3, PG + 5))
            A('v_or_b32 v%d, v%d, v%d' % (PG + 1, PG + 1, PG + 7))
            A('v_cmp_ne_u32 vcc, 0, v%d' % (PG + 1))
        def head():
            wait_for('P')
            A('s_mov_b32 s13, 0')
            chk()
            A('s_cbranch_vccnz L_keyre%s' % sf)
            A('L_keyok%s:' % sf)
            S.val(21, 13)
        def retry():
            A('L_keyre%s:' % sf)
            A('s_add_u32 s13, s13, 1')
            A('s_cmp_ge_u32 s13, %d' % SPIN_G)
            A('s_cbranch_scc1 L_keyok%s' % sf)
            poll_issue(False)
            A('s_waitcnt vmcnt(0)')
            chk()
            A('s_cbranch_vccnz L_keyre%s' % sf)
            A('s_branch L_keyok%s' % sf)
        DEFER.append(retry)
        FQ.append((9, head))
        W = Rec()
        W('v_max3_u32 v%d, v%d, v%d, v%d' % (PG, PG, PG + 2, PG + 4))
        W('v_max_u32 v%d, v%d, v%d' % (PG, PG, PG + 6))
        wave_sum(W, [PG], op='v_max_u32')
        fq_text(W.l)
        def xs():
            A('v_readlane_b32 s14, v%d, 63' % PG)
            A('s_and_b32 s15, s14, 2047')
            A('s_sub_u32 s15, 2047, s15')
            A('s_lshl_b32 s12, s15, 11')
            A('s_lshl_b32 s13, s70, 1')
            A('s_add_u32 s12, s12, s13')
            vm('buffer_load_dwordx4 v[36:39], v34, s[24:27], s12 offen', 'XS')
        FQ.append((4, xs))
        fq_text([['s_lshr_b32 s12, s14, 11', 's_and_b32 s13, s12, 0x8000', 's_cmp_lg_u32 s13, 0', 's_mov_b32 s13, 0xffff', 's_cselect_b32 s13, 0x8000, s13',
                  's_xor_b32 s12, s12, s13', 's_lshl_b32 s12, s12, 16', 'v_mov_b32 v105, s12'],
                 'v_mul_f32 v105, 0xbfb8aa3b, v105', 'v_exp_f32 v105, v105', 'v_add_f32 v105, 1.0, v105', 'v_rcp_f32 v105, v105',
                 'v_cvt_pk_bf16_f32 v105, v105, v105', 'v_lshlrev_b32 v105, 16, v105', ['s_add_u32 s12, s15, 1', 'v_mov_b32 v104, s12'], 'v_mov_b32 v106, s23',
                 'v_readfirstlane_b32 s14, v105', 'v_mov_b32 v14, %d' % P_SEL,
                 ['s_mov_b64 exec, 1', 'ds_write_b96 v14, v[104:106]', 's_mov_b64 exec, -1', 's_waitcnt lgkmcnt(0)']])
    def a_wo(first, c, lo=0, hi=None):
        def f():
            h = c if hi is None else hi
            A('s_mul_i32 s12, s21, %d' % c)
            A('s_add_u32 s12, s12, %d' % first)
            A('s_lshl_b32 s13, s12, 10')
            A('s_lshl_b32 s12, s12, 14')
            for i in range(lo, h):
                A('s_add_u32 m0, s13, %d' % (i * 1024 + (24576 if first >= 4 * HGAP else 0)))
                A('s_add_u32 s90, s12, %d' % (i * 16384))
                vm('buffer_load_dwordx4 v33, s[36:39], s90 offen lds', 'WO')
        return f
    def a_wq(sts):
        def f():
            for st in sts:
                if st < 16 - DQ: continue
                A('s_bfe_u32 s12, s%d, 0x%x' % (68 + (st >> 3), 0x40000 | (4 * (st & 7))))
                A('s_mul_i32 s12, s12, 393216')
                A('s_add_u32 m0, s95, %d' % DQ_W[st])
                for i in range(2):
                    vm('buffer_load_dwordx4 v%d, s[28:31], s12 offen offset:%d lds' % (WV + 4 + i, i * 1024), 'WQ')
        return f
    AC = 220
    PO = opt.get('po', 1)
    XP = 40
    def gemv_code():
        R = Rec()
        for j in range(4):
            R('v_and_b32 v%d, 0xffff, v%d' % (XP + 4 * j, 36 + j))
            R('v_lshlrev_b32 v%d, 16, v%d' % (XP + 4 * j + 1, 36 + j))
            R('v_lshrrev_b32 v%d, 16, v%d' % (XP + 4 * j + 2, 36 + j))
            R('v_and_b32 v%d, 0xffff0000, v%d' % (XP + 4 * j + 3, 36 + j))
        for i in range(8):
            for mat in range(2):
                for dw in range(4):
                    for o in range(2):
                        a = AC + mat * 8 + 2 * dw + o
                        R('v_dot2_f32_bf16 v%d, v%d, v%d, %s' % (a, 128 + mat * 32 + i * 4 + dw, XP + 2 * i + o, '0' if i == 0 else 'v%d' % a))
        for c in range(8): R('v_permlane32_swap_b32 v%d, v%d' % (AC + c, AC + 8 + c))
        for c in range(8): R('v_add_f32 v%d, v%d, v%d' % (AC + c, AC + c, AC + 8 + c))
        for c in range(4): R('v_permlane16_swap_b32 v%d, v%d' % (AC + c, AC + 4 + c))
        for c in range(4): R('v_add_f32 v%d, v%d, v%d' % (AC + c, AC + c, AC + 4 + c))
        for c in range(4): R('v_add_f32_dpp v%d, v%d, v%d row_ror:8 row_mask:0xf bank_mask:0xf' % (AC + c, AC + c, AC + c))
        return R.l
    def gemv_code2():
        R = ['s_mov_b32 s8, 0xffff0000']
        for j in range(4):
            R.append('v_lshlrev_b32 v%d, 16, v%d' % (XP + 2 * j, 36 + j))
            R.append('v_and_b32 v%d, s8, v%d' % (XP + 2 * j + 1, 36 + j))
        n = 0
        for i in range(8):
            for mat in range(2):
                for d2 in range(2):
                    op = 'v_mul_f32' if i == 0 else 'v_fmac_f32'
                    ws = [128 + mat * 32 + i * 4 + 2 * d2 + z for z in range(2)]
                    ts = [48 + 2 * (n & 1) + z for z in range(2)]; n += 1
                    for z in range(2): R.append('v_lshlrev_b32 v%d, 16, v%d' % (ts[z], ws[z]))
                    for z in range(2): R.append('v_and_b32 v%d, s8, v%d' % (ws[z], ws[z]))
                    for z in range(2): R.append('%s v%d, v%d, v%d' % (op, AC + mat * 8 + 2 * (2 * d2 + z), ts[z], XP + i))
                    for z in range(2): R.append('%s v%d, v%d, v%d' % (op, AC + mat * 8 + 2 * (2 * d2 + z) + 1, ws[z], XP + i))
        C = gemv_code()
        k = [j for j, x in enumerate(C) if 'permlane32' in x][0]
        return R + C[k:]
    GVL = gemv_code2() if opt.get('gp2', 1) else gemv_code()
    NG = opt.get('ng', 2)
    def a_gv(k, n):
        def f():
            wait_for('XS'); wait_for('M0'); wait_for('M1')
            per = (len(GVL) + n - 1) // n
            for x in GVL[k * per:(k + 1) * per]: A(x)
        return f
    def f_gv():
        def w(): wait_for('XS'); wait_for('M0'); wait_for('M1')
        FQ.append((1, w))
        fq_text(GVL)
    def a_gemv():
        if PO != 2: a_gv(0, 1)()
        A('''v_lshrrev_b32 v14, 5, v2
        v_lshlrev_b32 v14, 8, v14
        v_lshl_add_u32 v14, v6, 5, v14
        v_and_b32 v16, 16, v2
        v_add_u32 v14, v14, v16
        s_lshl_b32 s12, s21, 9
        s_add_u32 s12, s12, %d
        v_add_u32 v14, s12, v14
        ds_write_b128 v14, %s
        v_mov_b32 v14, %d
        v_mov_b32 v16, 1
        s_mov_b64 exec, 1
        ds_add_rtn_u32 v17, v14, v16
        s_mov_b64 exec, -1
        s_waitcnt lgkmcnt(0)
        v_readfirstlane_b32 s12, v17
        s_cmp_lg_u32 s12, 3
        s_cbranch_scc1 L_nogu
        s_cmp_ge_u32 s10, 224
        s_cbranch_scc1 L_nogu
        v_lshlrev_b32 v14, 2, v2
        v_add_u32 v14, %d, v14''' % (P_GUS, vr(AC, 4), P_CNT, P_GUS))
        for s in range(4):
            A('ds_read2st64_b32 %s, v14 offset0:%d offset1:%d' % (vr(AC + 2 * s, 2), 2 * s, 2 * s + 1))
        A('''s_and_b32 s12, s10, 3
        s_mul_i32 s12, s12, 28672
        s_lshr_b32 s13, s10, 2
        s_lshl_b32 s13, s13, %d
        s_add_u32 s12, s12, %d
        s_xor_b32 s90, s13, %d
        s_add_u32 s90, s90, s12
        s_add_u32 s90, s90, 14336
        s_add_u32 s12, s12, s13
        v_lshlrev_b32 v14, %d, v2
        v_and_b32 v16, 1, v2
        v_lshlrev_b32 v16, 4, v16
        v_lshrrev_b32 v16, v16, s23
        v_bfe_u32 v17, v16, 8, 8
        v_and_b32 v16, 0xff, v16
        s_mov_b32 s13, 0xffffff00
        s_waitcnt lgkmcnt(0)''' % (8 if GS else 9, OFF_GU, GS << 8, 2 if GS else 3))
        A('v_pk_add_f32 %s, %s, %s' % (vr(AC, 2), vr(AC, 2), vr(AC + 2, 2)))
        A('v_pk_add_f32 %s, %s, %s' % (vr(AC + 4, 2), vr(AC + 4, 2), vr(AC + 6, 2)))
        A('v_pk_add_f32 %s, %s, %s' % (vr(AC, 2), vr(AC, 2), vr(AC + 4, 2)))
        A('v_and_or_b32 v%d, v%d, s13, v16' % (AC, AC))
        A('v_and_or_b32 v%d, v%d, s13, v17' % (AC + 1, AC + 1))
        if GS:
            vm('buffer_store_dword v%d, v14, s[32:35], s12 offen sc1' % AC, '?GU')
            vm('buffer_store_dword v%d, v14, s[32:35], s90 offen sc1' % (AC + 1), '?GU')
        else: vm('buffer_store_dwordx2 %s, v14, s[32:35], s12 offen sc1' % vr(AC, 2), '?GU')
        A('L_nogu:')
    def a_done():
        A('v_mov_b32 v14, %d' % P_DONE)
        A('s_mov_b32 s13, 0')
        A('L_dspin%s:' % SFX[0])
        A('ds_read_b128 v[104:107], v14')
        A('s_add_u32 s13, s13, 1')
        A('s_cmp_ge_u32 s13, %d' % SPIN_L)
        A('s_cbranch_scc1 L_dok%s' % SFX[0])
        A('s_waitcnt lgkmcnt(0)')
        A('v_and_b32 v104, v104, v105')
        A('v_and_b32 v106, v106, v107')
        A('v_and_b32 v104, v104, v106')
        A('v_cmp_eq_u32 vcc, 1, v104')
        A('s_cbranch_vccz L_dspin%s' % SFX[0])
        A('L_dok%s:' % SFX[0])
        A('s_waitcnt lgkmcnt(0)')

    ACT = dict(wphi=a_wphi, rgload=a_rgload, tag=a_tag, tagchk=a_tagchk, pub=a_pub, gate=a_moe(0), up=a_moe(1), down=a_down,
               poll=a_poll, eval=a_eval, clr=a_clr, wo1=a_wo(96, 8), wo1b=a_wo(40, 4), wo2=a_wo(56, 10), gemv=a_gemv)
    ACT.update(tw=a_tw, Frg=f_rg, Feval=f_eval, Fgv=f_gv, flush=lambda: fill(10000), gw=lambda: wait_for('G'))
    ACT.update(wa=a_wo(0, 4), wb=a_wo(96, 4), wc=a_wo(16, 4), wd=a_wo(32, 4), we=a_wo(64, 2), wf=a_wo(112, 4))
    WR = opt.get('wreg', 1) if DQ else 0
    PQ = opt.get('pq', 0 if WR else 1)
    WRC = [84, 88, 92, 96, 100, 116, 120, 124, 64, 68, 72, 236, 240, 244, 248, 252, 220, 224, 228, 232]
    WRX = list(range(128, 192, 4))
    def wr_base(d, mul, first, sh):
        A('s_mul_i32 s%d, s21, %d' % (d, mul)); A('s_add_u32 s%d, s%d, %d' % (d, d, first))
        if opt.get('wx', 1):
            A('s_and_b32 s90, s88, 1'); A('s_lshl_b32 s90, s90, 6'); A('s_xor_b32 s%d, s%d, s90' % (d, d))
        if sh == 10:
            A('s_cmp_ge_u32 s%d, 32' % d); A('s_cselect_b32 s90, 24, 0'); A('s_add_u32 s%d, s%d, s90' % (d, d))
        A('s_lshl_b32 s%d, s%d, %d' % (d, d, sh))
    def a_wr(regs, lo, hi, mul, first):
        def f():
            if hi <= lo: return
            wr_base(12, mul, first, 14)
            for i in range(lo, hi):
                A('s_add_u32 s90, s12, %d' % (i << 14))
                vm('buffer_load_dwordx4 %s, v33, s[36:39], s90 offen' % vr(regs[i], 4), 'WO')
        return f
    W1 = opt.get('w1', 8)
    def a_wr2(): a_wr(WRC, W1, 16, 16, 0)(); a_wr(WRC[16:], 0, 4, 4, 64)()
    ACT.update(wr1=a_wr(WRC, 0, W1, 16, 0), wr2=a_wr2)
    def a_pq(js):
        def f():
            A('s_and_b32 s12, s88, 1'); A('s_lshl_b32 s12, s12, 2'); A('s_add_u32 s12, s12, s21')
            if opt.get('px', 1):
                A('s_add_u32 s12, s12, s16'); A('s_and_b32 s12, s12, 7')
                if opt.get('px', 1) == 2: A('s_lshr_b32 s13, s16, 1'); A('s_add_u32 s12, s21, s13'); A('s_and_b32 s12, s12, 3'); A('s_and_b32 s13, s88, 1'); A('s_lshl_b32 s13, s13, 2'); A('s_add_u32 s12, s12, s13')
            A('s_lshl_b32 s12, s12, 18')
            A('s_lshl_b32 s13, s89, 7'); A('s_add_u32 s12, s12, s13')
            A('v_lshlrev_b32 v118, 11, v2')
            js_ = list(js)
            while js_:
                j = js_.pop(0)
                A('s_add_u32 s13, s12, %d' % (j * 32 * 2048))
                if js_ and js_[0] == j + 1: js_.pop(0)
                else: A('s_mov_b32 exec_hi, 0')
                for k in range(PQ): vm('buffer_load_dword v119, v118, s[36:39], s13 offen offset:%d' % (k * 128 // PQ), 'PQ')
                A('s_mov_b64 exec, -1')
        return f
    PQT = [int(c, 36) + 7 for c in str(opt.get('pqt', 9999))]
    for t in range(7, 17): ACT['pq%d' % t] = a_pq([j for j in range(4) if PQT[j] == t])
    ACT.update(wqa=a_wq([11, 12]), wqb=a_wq([13, 14]))
    def wo_last():
        if DQ:
            a_wq([15])()
            if WR:
                A('s_cmp_eq_u32 s21, 0')
                A('s_cbranch_scc1 L_nowrx')
                a_wr(WRX, 0, 16, 16, 64)()
                A('L_nowrx:')
            if PQ and 7 in PQT: ACT['pq7']()
        elif R4: a_wo(48, 4)(); a_wo(72, 6)()
        else: a_wo(0, 10)()
    for k in range(NP): ACT['rgc%d' % k] = a_rgc(k)
    for k in range(NG): ACT['gv%d' % k] = a_gv(k, NG)
    GP = opt.get('gp', 0); U1 = opt.get('u1', 4)
    ACT['upa'] = a_moe(1, 0, U1); ACT['upb'] = a_moe(1, U1, 8)
    NV = opt.get('nv', 1 if GP else 5); SPC = opt.get('sp', 5); G0 = opt.get('g0', 2)
    LAG = [int(c) or 10 for c in str(opt.get('lag', 579))]
    STA = [int(c) or 10 for c in str(opt.get('sta', 0))]
    def pairs(x):
        x = str(x)[1:]; return [int(x[i:i + 2]) for i in range(0, len(x), 2)]
    LG2 = pairs(opt.get('lg', 11000060912))
    if R4: STA = pairs(opt.get('st2', 11214))
    def sched(v):
        rgs = v * opt.get('rgs', 0)
        rt = opt.get('rt', 3) + rgs
        SCH = {t: [] for t in range(1, 17)}
        K = {t: opt.get('ra', 18) if R4 else 10 for t in range(0, 16)}
        K[0] = PRE
        for i, k in enumerate(STA): K[1 + i] = k
        def blk(t, name):
            SCH[t].append(name)
            if R4:
                for i, k in enumerate(LG2):
                    if t + i <= 14: K[t + i] = min(K[t + i], k)
                return
            if t <= 14: K[t] = min(K[t], opt.get('kb', 10))
            for i, k in enumerate(LAG):
                if t + 1 + i <= 14: K[t + 1 + i] = min(K[t + 1 + i], k)
        SCH[opt.get('t_phi', 1)] += ['wphi']
        if TW and opt.get('t_tw', 0): SCH[opt.get('t_tw', 0)].append('tw')
        t_rg = opt.get('t_rg', 1) + rgs
        if opt.get('rgl', 0): blk(t_rg, 'rgload')
        else: SCH[t_rg].append('rgload')
        if NV > 1: tg, tu, td = G0 + v, G0 + v + SPC, min(16, G0 + v + 2 * SPC)
        else: tg, tu, td = opt.get('t_gate', 2), opt.get('t_up', 5), opt.get('t_down', 8)
        if opt.get('dl', 0) == 1: td = 16
        if GP:
            SCH[opt.get('t_gate', 14)].append('gate')
            SCH[opt.get('t_upa', 15)].append('upa'); SCH[opt.get('t_upb', 16)].append('upb')
        else:
            if opt.get('mg', 0) >= 1: tg = tu = G0 + v * opt.get('vs', 1); td = tg + SPC
            if opt.get('mg', 0) == 2: td = tg
            blk(tg, 'gate'); blk(tu, 'up')
            if opt.get('dl', 0) < 2: blk(td, 'down')
        if FM: SCH[rt].insert(0, 'Frg')
        else:
            for k in range(NP): SCH[rt + k].append('rgc%d' % k)
        SCH[opt.get('t_tag', 3)].append('tag')
        SCH[opt.get('t_clr', 2)].insert(0, 'clr')
        tp = rt + NP + opt.get('tpd', 2)
        if FM:
            SCH[opt.get('t_gv', 14)].insert(0, 'Fgv')
            SCH[rt + NP - 1].append('flush')
        elif PO == 2:
            for k in range(NG): SCH[opt.get('t_gv', 14) + k].append('gv%d' % k)
        SCH[tp - 1].append('gw')
        SCH[tp] += ['tagchk', 'pub']
        SCH[opt.get('t_poll', 12)].append('poll')
        if FM:
            SCH[opt.get('t_eval', 14)].insert(0, 'Feval')
            if opt.get('t_gv', 14) > opt.get('t_eval', 14): SCH[min(15, opt.get('t_gv', 14) - 1)].append('flush')
        else: SCH[opt.get('t_eval', 14)].append('eval')
        if R4:
            SCH[opt.get('t_wa', 14)].append('wa'); SCH[opt.get('t_wb', 14)].append('wb'); SCH[opt.get('t_wc', 15)].append('wc')
            SCH[16] += ['wd', 'we', 'wf']
        elif DQ:
            SCH[opt.get('t_wqa', 15)].append('wqa'); SCH[opt.get('t_wqb', 16)].append('wqb')
            if WR:
                assert W1 <= 16
                if W1: SCH[opt.get('t_wr1', 15)].append('wr1')
                SCH[16].append('wr2')
            if PQ:
                for t in sorted(set(PQT)):
                    if t > 7: SCH[t].append('pq%d' % t)
        elif not GP:
            SCH[opt.get('t_wo1', 15)].append('wo1')
            SCH[opt.get('t_wo1b', 16)].append('wo1b')
            SCH[16] += ['wo2']
        for t in SCH: SCH[t].sort(key=lambda a: 1 if a.startswith('gv') else 0)
        BUD = opt.get('bud', 0)
        if BUD:
            COST = dict(wphi=1, rgload=8, gate=8, up=8, down=7, wo1=8, poll=2, tag=1, clr=1, pub=1)
            for t in range(1, 15):
                K[t] = max(opt.get('kmin', 0), min(10, BUD - (10 - K[t - 1]) - sum(COST.get(a, 0) for a in SCH[t])))
        return SCH, K

    if NV > 1:
        VS = 17 if opt.get('vj', 0) else 2
        A('s_mul_i32 s12, s%d, %d' % (VS, (65536 + NV - 1) // NV))
        A('s_lshr_b32 s12, s12, 16')
        A('s_mul_i32 s12, s12, %d' % NV)
        A('s_sub_u32 s3, s%d, s12' % VS)
        if opt.get('p3', 0):
            A('s_cmp_ge_u32 s10, 224')
            A('s_cselect_b32 s3, %d, s3' % opt.get('p3v', 0))
    JB = opt.get('jb', 0)
    if not JB:
        wait_for('S0')
        A('s_barrier')
        S(1)
    for v in range(1, NV):
        A('s_cmp_eq_u32 s3, %d' % v)
        A('s_cbranch_scc1 L_var%d' % v)
    Q0 = list(Q)
    for v in range(NV):
        Q[:] = Q0
        SFX[0] = '_%d' % v
        if v == 0 and opt.get('v0p', 0): A('s_branch L_var0')
        if (v or opt.get('v0p', 0)) and opt.get('vp', 0):
            vp = opt.get('vp%d' % v, opt['vp'])
            A.raw(';@PAD L_bw%d_%d %d' % (vp, v, opt.get('vo', 0)) if vp < 16 else ';@PAD L_var%d 0' % v)
        A('L_var%d:' % v)
        A.raw(';@REG v%d' % v)
        A('s_nop 0')
        if JB:
            wait_for('S0')
            A('s_barrier')
            S(1)
        SCH, K = sched(v)
        POS = [10 + PRE]
        for t in range(1, 16):
            for a in SCH[t]:
                if a[0] == 'F': ACT[a]()
            if R4:
                MF = []; NF_[0] = 0
                tgt = min(160, max(POS[0], 10 * (t + 1) + K[t]))
                while POS[0] < tgt:
                    st = POS[0] // 10; hi = min(10, tgt - 10 * st)
                    issue(st, POS[0] - 10 * st, hi); POS[0] = 10 * st + hi
            else:
                if K[t - 1] < 10: issue(t, K[t - 1], 10)
                MF = [a for a in SCH[t] if a in ('gate', 'up', 'down', 'rgload')] if opt.get('mf', 0) else []
                for a in MF: ACT[a]()
                if t + 1 <= 15: issue(t + 1, 0, K[t])
            DS = opt.get('ds', 0)
            if DS: A('s_memtime s[6:7]')
            for a in SCH[t]:
                if a[0] != 'F' and a not in MF: ACT[a]()
            fill(FE + (FI * max(0, 10 - NF_[0]) if R4 else 0))
            if DS:
                A('s_waitcnt lgkmcnt(0)'); A('v_writelane_b32 v243, s6, %d' % t)
                A('s_memtime s[98:99]')
            if opt.get('vp', 0): A.raw('L_bw%d_%d:' % (t, v))
            wait_for('S%d' % t)
            if DS: A('s_memtime s[100:101]')
            A('s_barrier')
            if DS:
                A('s_memtime s[6:7]'); A('s_waitcnt lgkmcnt(0)')
                A('v_writelane_b32 v240, s98, %d' % t); A('v_writelane_b32 v241, s100, %d' % t); A('v_writelane_b32 v242, s6, %d' % t)
            if t in (4, 8, 12, 14, 15): S({4: 2, 8: 3, 12: 4, 14: 5, 15: 6}[t])
            if t == opt.get('vt', 4):
                for _ in range(opt.get('vn', 0)): A.raw('s_nop 0')
        if 'Fgv' in SCH[16]:
            f_gv(); SCH[16].remove('Fgv')
        fill(10000)
        if PO != 2:
            for a in SCH[16]: ACT[a]()
        else: assert v == 0 or SCH[16] == S16, (SCH[16], S16)
        S16 = SCH[16]
        if not GP and PO == 1:
            a_done()
            wo_last()
        wait_for('XS'); wait_for('M0'); wait_for('M1')
        A.raw(';@END')
        if v < NV - 1 or opt.get('tp', 0): A('s_branch L_varend')
    if opt.get('tp', 0): A.raw(';@PAD %s %d' % (['', 'L_varend', 'L_gth', 'L_h1', 'L_h1d', 'L_h1ok', 'L_gu', 'L_guw', 'L_guok'][opt['tp']], opt.get('to', 0)))
    A('L_varend:')
    for _ in range(opt.get('pa', 0)): A.raw('s_nop 0')
    A('s_nop 0')
    del Q[:]
    S(7)
    if opt.get('ds', 0):
        A('s_lshl_b32 s98, s20, 8'); A('s_add_u32 s98, s98, s2'); A('s_lshl_b32 s98, s98, 10')
        A('s_add_u32 s98, s98, %d' % (OFF_ST + (1 << 20)))
        A('v_lshlrev_b32 v244, 2, v2')
        for k in range(4): A('buffer_store_dword v%d, v244, s[32:35], s98 offen offset:%d' % (240 + k, 256 * k))
    if opt.get('dg', 0):
        A('s_waitcnt vmcnt(0)')
        S.rt(22)
    SFX[0] = '_g'
    if opt.get('dl', 0) == 3: a_down()
    if PO == 2:
        for a in S16:
            if a.startswith('gv'): ACT[a]()
    a_gemv()
    S(8)
    if PO == 2:
        for a in S16:
            if not a.startswith('gv'): ACT[a]()
    if not GP and PO != 1:
        a_done()
        wo_last()
    if GP or opt.get('dl', 0) == 2: a_down()
    A('v_mov_b32 v62, v6')
    A('v_mov_b32 v63, v35')
    A('s_mov_b32 s86, s96')
    A('s_mov_b32 s4, s15')
    A('s_mov_b32 s5, s14')
    A('v_mov_b32 v61, v33')
    S.rt(19)
    PL = opt.get('pl', 1)
    pb_prep(A, opt, 1 if PL else 3)
    S.rt(20)
    if GP:
        WN = opt.get('wn', 6)
        A('s_cmp_eq_u32 s21, 0')
        A('s_cbranch_scc1 L_nowo')
        a_done()
        A('s_sub_u32 s6, s21, 1')
        A('s_and_b32 s8, s88, 1')
        A('s_mul_i32 s8, s8, %d' % opt.get('wr', 64))
        if opt.get('wx', 1):
            A('s_lshl_b32 s9, s16, 3'); A('s_add_u32 s8, s8, s9')
        if opt.get('wc', 1):
            A('s_and_b32 s9, s89, 7'); A('s_add_u32 s8, s8, s9')
        A('L_wo:')
        A('s_add_u32 s7, s6, s8')
        A('s_and_b32 s7, s7, 127')
        A('s_lshl_b32 s9, s7, 10')
        A('s_cmp_ge_u32 s7, 40')
        A('s_cselect_b32 s10, 24576, 0')
        A('s_add_u32 m0, s9, s10')
        A('s_lshl_b32 s7, s7, 14')
        A('s_waitcnt vmcnt(%d)' % (WN - 1))
        A('buffer_load_dwordx4 v61, s[36:39], s7 offen lds')
        A('s_add_u32 s6, s6, 3')
        A('s_cmp_lt_u32 s6, 128')
        A('s_cbranch_scc1 L_wo')
        A('s_waitcnt vmcnt(0)')
        A('L_nowo:')
    if opt.get('nb', 0):
        A('s_lshl_b32 s12, s21, 2'); A('s_add_u32 s12, s12, %d' % P_WO)
        A('v_mov_b32 v78, s12'); A('v_mov_b32 v79, 1')
        A('s_mov_b64 exec, 1'); A('ds_write_b32 v78, v79'); A('s_mov_b64 exec, -1')
    def ldsgate(addr, tg):
        A('v_mov_b32 v78, %d' % addr)
        A('s_mov_b32 s13, 0')
        A('L_gt%s:' % tg)
        A('ds_read_b128 v[104:107], v78')
        A('s_add_u32 s13, s13, 1')
        A('s_cmp_ge_u32 s13, %d' % SPIN_L)
        A('s_cbranch_scc1 L_gx%s' % tg)
        A('s_waitcnt lgkmcnt(0)')
        A('v_and_b32 v104, v104, v105')
        A('v_and_b32 v106, v106, v107')
        A('v_and_b32 v104, v104, v106')
        A('v_cmp_eq_u32 vcc, 1, v104')
        A('s_cbranch_vccz L_gt%s' % tg)
        A('L_gx%s:' % tg)
        A('s_waitcnt lgkmcnt(0)')
    GA = {1: P_XF, 2: P_KS, 3: P_QD, 4: P_QM}
    if DQ:
        A('s_lshl_b32 s12, s21, 2'); A('s_add_u32 s12, s12, %d' % P_WQ)
        A('v_mov_b32 v78, s12'); A('v_mov_b32 v79, 1')
        if WR:
            A('s_cmp_eq_u32 s21, 0')
            A('s_cbranch_scc1 L_wqw0')
            A('s_waitcnt vmcnt(19)')
            A('s_branch L_wqw1')
            A('L_wqw0:')
        A('s_waitcnt vmcnt(3)')
        if WR: A('L_wqw1:')
        A('s_mov_b64 exec, 1'); A('ds_write_b32 v78, v79'); A('s_mov_b64 exec, -1')
    L0 = opt.get('l0', 0)
    def wr_flush(sx='', only0=False):
        A('s_mov_b32 s7, s90')
        wr_base(12, 16, 0, 10); A('v_add_u32 v76, s12, v5')
        if not only0: wr_base(12, 16, 64, 10); A('v_add_u32 v77, s12, v5')
        wr_base(12, 4, 64, 10); A('v_add_u32 v60, s12, v5')
        A('s_mov_b32 s90, s7')
        A('v_mov_b32 v113, %d' % P_QD)
        A('s_mov_b32 s13, 0')
        A('L_gtf%s:' % sx)
        A('ds_read_b128 v[128:131] if False else None') if False else None
        A('ds_read_b64 v[114:115], v113')
        A('ds_read_b64 v[82:83], v113 offset:8')
        A('s_add_u32 s13, s13, 1')
        A('s_cmp_ge_u32 s13, %d' % SPIN_L)
        A('s_cbranch_scc1 L_gxf%s' % sx)
        A('s_waitcnt lgkmcnt(0)')
        A('v_and_b32 v114, v114, v115')
        A('v_and_b32 v82, v82, v83')
        A('v_and_b32 v114, v114, v82')
        A('v_cmp_eq_u32 vcc, 1, v114')
        A('s_cbranch_vccz L_gtf%s' % sx)
        A('L_gxf%s:' % sx)
        A('s_waitcnt lgkmcnt(0)')
        S.rt(22)
        for i in range(20): A('ds_write_b128 v%d, %s offset:%d' % (76 if i < 16 else 60, vr(WRC[i], 4), (i & 15) * 1024))
        if not only0:
            if L0 in (0, 3, 4):
                A('s_cmp_eq_u32 s21, 0')
                A('s_cbranch_scc1 L_nofx')
            for i in range(16): A('ds_write_b128 v77, %s offset:%d' % (vr(WRX[i], 4), i * 1024))
            A('L_nofx:')
        A('s_waitcnt lgkmcnt(0)')
        S.rt(23)
    def wo_loop(part=(0, 11), tg='a', gate=P_QD):
        WN = opt.get('wn', 8)
        A('s_cmp_eq_u32 s21, 0')
        A('s_cbranch_scc1 L_nowo%s' % tg)
        if gate: ldsgate(gate, 'q' + tg)
        S.rt(22 if part[0] == 0 else 21)
        G0_, G1_ = part
        A('s_cmp_eq_u32 s21, 2'); A('s_cselect_b32 s6, 10, 21'); A('s_cmp_eq_u32 s21, 1'); A('s_cselect_b32 s6, 0, s6')
        A('s_cselect_b32 s8, 0, 24576'); A('s_cselect_b32 s9, %d, %d' % (min(10, G1_) - G0_, G1_ - G0_))
        if G0_: A('s_add_u32 s6, s6, %d' % G0_)
        A('s_lshl_b32 s7, s6, 16'); A('s_lshl_b32 s6, s6, 12'); A('s_add_u32 s6, s6, s8')
        for k in range(1, 4): A('v_add_u32 v%d, %d, v61' % (116 + k, k * (16384 - 1024)))
        A('L_wo%s:' % tg)
        A('s_mov_b32 m0, s6')
        A('s_waitcnt vmcnt(%d)' % max(0, WN - 4))
        for k in range(4):
            A('buffer_load_dwordx4 v%d, s[36:39], s7 offen offset:%d lds' % (116 + k if k else 61, k * 1024))
        A('s_add_u32 s6, s6, 4096')
        A('s_add_u32 s7, s7, 65536')
        A('s_sub_u32 s9, s9, 1')
        A('s_cmp_lg_u32 s9, 0')
        A('s_cbranch_scc1 L_wo%s' % tg)
        if G1_ == 11: A('s_waitcnt vmcnt(0)')
        S.rt(23 if part[1] == 11 else 9)
        A('L_nowo%s:' % tg)
    if PL == 2: pb_prep(A, opt, 2)
    A('s_cmp_lg_u32 s21, 0')
    A('s_cbranch_scc0 L_hop')
    if PL == 1: pb_prep(A, opt, 2)
    EB = opt.get('eb', 0)
    def woflag():
        if not EB: return
        A('s_lshl_b32 s12, s21, 2'); A('s_add_u32 s12, s12, %d' % P_WO)
        A('v_mov_b32 v78, s12'); A('v_mov_b32 v79, 1')
        A('s_mov_b64 exec, 1'); A('ds_write_b32 v78, v79'); A('s_mov_b64 exec, -1')
    if EB: assert PL
    woflag()
    WP = 0 if WR else opt.get('wp', 0)
    if DQ and WP: wo_loop((0, WP), 'a')
    elif opt.get('gug', 2): ldsgate(GA[opt.get('gug', 2)], 'u')
    H1F = opt.get('h1f', 2)
    def moe_down(sx, HM, AC, first):
        A('''v_min_u32 v80, 6, v62
        v_lshl_add_u32 v80, v80, 3, v4
        v_lshlrev_b32 v80, %d, v80
        s_lshl_b32 s12, s86, %d
        s_add_u32 s80, s12, %d
        s_add_u32 s81, s80, 28672
        s_add_u32 s82, s80, 57344
        s_add_u32 s83, s80, 86016
        v_and_b32 v78, 1, v4
        v_lshlrev_b32 v78, 4, v78
        v_lshrrev_b32 v78, v78, s23
        v_bfe_u32 v79, v78, 8, 8
        v_and_b32 v78, 0xff, v78
        s_mov_b32 s13, 0''' % (2 if GS else 3, 2 if GS else 3, OFF_GU))
        if GS: A('v_add_u32 v81, 14336, v80')
        A('L_gu%s:' % sx)
        for k in range(4):
            if GS:
                A('buffer_load_dword v%d, v80, s[32:35], s%d offen sc1' % (104 + 2 * k, 80 + k))
                A('buffer_load_dword v%d, v81, s[32:35], s%d offen sc1' % (105 + 2 * k, 80 + k))
            else: A('buffer_load_dwordx2 %s, v80, s[32:35], s%d offen sc1' % (vr(104 + 2 * k, 2), 80 + k))
        A('s_add_u32 s13, s13, 1')
        A.raw('L_guw%s:' % sx)
        if H1F == 2 and L0 != 1:
            A('s_cmp_lg_u32 s21, 0')
            A('s_cbranch_scc1 L_nofl')
            if L0 == 4:
                A('s_cmp_lg_u32 s13, 1')
                A('s_cbranch_scc1 L_not2')
                pb_prep_b(A, opt, False)
                A('L_not2:')
            A('s_waitcnt vmcnt(%d)' % (8 if GS else 4))
            A('v_mov_b32 v112, %d' % P_H1); A('v_mov_b32 v113, 1')
            A('s_mov_b64 exec, 1'); A('ds_write_b32 v112, v113'); A('s_mov_b64 exec, -1')
            if L0 == 2: A('s_branch L_noflush')
            A('L_nofl:')
        if WR and opt.get('wf', 1) and not first:
            A('s_cmp_lg_u32 s13, 1')
            A('s_cbranch_scc1 L_noflush')
            wr_flush()
            A('s_mov_b32 s13, 1')
            A('L_noflush:')
        A('s_waitcnt vmcnt(0)')
        A('v_msad_u8 v112, v104, v78, 0')
        for k in range(1, 8): A('v_msad_u8 v112, v%d, v%d, v112' % (104 + k, 78 + (k & 1)))
        A('v_cmp_ne_u32 vcc, 0, v112')
        A('s_cbranch_vccz L_guok%s' % sx)
        A('s_cmp_lt_u32 s13, %d' % SPIN_G)
        A('s_cbranch_scc1 L_gu%s' % sx)
        A('L_guok%s:' % sx)
        S.val(23, 13)
        S(11)
        if WR and not opt.get('wf', 1) and not first: wr_flush()
        A('''v_pk_add_f32 v[104:105], v[104:105], v[106:107]
        v_pk_add_f32 v[108:109], v[108:109], v[110:111]
        v_pk_add_f32 v[104:105], v[104:105], v[108:109]
        v_cvt_pk_bf16_f32 v104, v104, v105
        v_and_b32 v105, 0xffff0000, v104
        v_lshlrev_b32 v104, 16, v104
        v_mul_f32 v106, 0xbfb8aa3b, v104
        v_exp_f32 v106, v106
        v_add_f32 v106, 1.0, v106
        v_rcp_f32 v106, v106
        v_mul_f32 v106, v106, v104
        v_cvt_pk_bf16_f32 v106, v106, v106
        v_lshlrev_b32 v106, 16, v106
        v_mul_f32 v106, v106, v105
        v_cvt_pk_bf16_f32 v106, v106, v106''')
        for i in range(7):
            A('ds_swizzle_b32 v%d, v106 offset:0x%x' % (HM + 2 * i, (i << 5) | 0x18))
        A('s_waitcnt lgkmcnt(0)')
        for i in range(7):
            A('v_and_b32 v%d, 0xffff0000, v%d' % (HM + 1 + 2 * i, HM + 2 * i))
            A('v_and_b32 v%d, 0xffff, v%d' % (HM + 2 * i, HM + 2 * i))
        for i in range(7):
            for dw in range(4):
                for o in range(2):
                    a = AC + 2 * dw + o
                    A('v_dot2_f32_bf16 v%d, v%d, v%d, %s' % (a, 192 + i * 4 + dw, HM + 2 * i + o, '0' if i == 0 else 'v%d' % a))
        for c in range(4): A('v_permlane32_swap_b32 v%d, v%d' % (AC + c, AC + 4 + c))
        for c in range(4): A('v_add_f32 v%d, v%d, v%d' % (AC + c, AC + c, AC + 4 + c))
        for c in range(2): A('v_permlane16_swap_b32 v%d, v%d' % (AC + c, AC + 2 + c))
        for c in range(2): A('v_add_f32 v%d, v%d, v%d' % (AC + c, AC + c, AC + 2 + c))
        for c in range(2): A('v_add_f32_dpp v%d, v%d, v%d row_ror:8 row_mask:0xf bank_mask:0xf' % (AC + c, AC + c, AC + c))
        A('''v_lshrrev_b32 v80, 4, v2
        v_lshlrev_b32 v80, 3, v80
        v_lshl_add_u32 v80, v62, 5, v80
        s_lshl_b32 s12, s21, 8
        s_add_u32 s12, s12, %d
        v_add_u32 v80, s12, v80
        ds_write_b64 v80, %s
        v_mov_b32 v80, %d
        v_mov_b32 v78, 1
        s_mov_b64 exec, 1
        ds_add_rtn_u32 v79, v80, v78 offset:4
        s_mov_b64 exec, -1
        s_waitcnt lgkmcnt(0)
        v_readfirstlane_b32 s12, v79
        s_cmp_lg_u32 s12, 3
        s_cbranch_scc1 L_noy%s
        v_lshlrev_b32 v78, 2, v2
        v_add_u32 v80, %d, v78
        ds_read2st64_b32 %s, v80 offset0:0 offset1:1
        ds_read2st64_b32 %s, v80 offset0:2 offset1:3
        s_lshl_b32 s12, s11, 8
        s_add_u32 s12, s12, %d
        s_mov_b32 s13, 0xffffff00
        s_waitcnt lgkmcnt(0)
        v_pk_add_f32 %s, %s, %s
        v_add_f32 v%d, v%d, v%d
        v_and_or_b32 v%d, v%d, s13, v63
        buffer_store_dword v%d, v78, s[32:35], s12 offen sc1''' % (P_YS, vr(AC, 2), P_CNT, sx, P_YS, vr(AC, 2), vr(AC + 2, 2), OFF_YP,
                                                                  vr(AC, 2), vr(AC, 2), vr(AC + 2, 2), AC, AC, AC + 1, AC, AC, AC))
        A('L_noy%s:' % sx)
        S(12)
    A('s_branch L_nohop')
    A('L_hop:')
    if L0 == 1:
        if opt.get('l0g', 1): ldsgate(GA[opt.get('l0g', 1)], 'z')
        moe_down('z', 128, 144, True)
    if L0 in (1, 2, 3): pb_prep(A, opt, 2)
    if opt.get('h1w', 2): ldsgate(GA[opt.get('h1w', 2)], 'h')
    H = 128
    A('''s_lshl_b32 s12, s19, 18
    s_lshl_b32 s13, s18, 14
    s_add_u32 s12, s12, s13
    s_add_u32 s80, s12, %d
    s_add_u32 s81, s80, 4096
    s_add_u32 s82, s80, 8192
    s_add_u32 s83, s80, 12288
    s_mov_b32 s13, 0''' % OFF_KVP)
    if ZP1:
        A('''s_lshl_b32 s12, s19, 13
        s_lshr_b32 s84, s18, 2
        s_lshl_b32 s84, s84, 11
        s_add_u32 s12, s12, s84
        s_bfe_u32 s84, s18, 0x10001
        s_lshl_b32 s84, s84, 6
        s_add_u32 s12, s12, s84
        s_and_b32 s84, s18, 1
        s_lshl_b32 s84, s84, 4
        s_add_u32 s12, s12, s84
        s_add_u32 s84, s12, %d
        v_and_b32 v80, 15, v2
        v_lshlrev_b32 v80, 7, v80
        v_lshrrev_b32 v78, 5, v2
        v_lshl_add_u32 v80, v78, 5, v80''' % OFF_ZP)
    else:
        A('''s_lshl_b32 s12, s19, %d
        s_lshl_b32 s84, s18, %d
        s_add_u32 s12, s12, s84
        s_add_u32 s84, s12, %d
        v_and_b32 v80, 15, v2
        v_lshlrev_b32 v80, %d, v80
        v_lshrrev_b32 v78, 5, v2
        v_lshl_add_u32 v80, v78, 4, v80''' % (8 + ZSL, 4 + ZSL, OFF_ZP, ZSL))
    def zload(): A('buffer_load_dwordx4 v[104:107], v80, s[32:35], s84 offen sc1')
    def zmiss(d):
        A('v_msad_u8 v108, v104, s76, 0')
        for k in range(1, 4): A('v_msad_u8 v108, v%d, s%d, v108' % (104 + k, 76 + k))
        A('v_cmp_ne_u32 vcc, 0, v108')
        A('s_or_b32 s%d, vcc_lo, vcc_hi' % d)
        A('s_and_b32 s%d, s%d, 0xffff' % (d, d))
    TH1 = opt.get('th1', 6)
    S.rt(21)
    if opt.get('hp', 0): A('s_setprio %d' % opt.get('hp', 0))
    A('s_mov_b32 s87, %d' % opt.get('h1b', 0))
    A('s_mov_b32 s85, 0xffff')
    if opt.get('hdl', 0): A('s_sleep %d' % opt['hdl'])
    A('L_h1:')
    zload()
    A('s_add_u32 s13, s13, 1')
    A('s_cmp_ge_u32 s13, %d' % SPIN_G)
    A('s_cbranch_scc1 L_h1ok')
    A('s_cmp_lg_u32 s87, 0')
    A('s_cbranch_scc1 L_h1d')
    A('s_waitcnt vmcnt(0)')
    zmiss(12)
    A('s_bcnt1_i32_b32 s12, s12')
    A('s_cmp_le_u32 s12, %d' % TH1)
    A('s_cselect_b32 s87, 1, 0')
    A('s_branch L_h1')
    A('L_h1d:')
    for i in range(16):
        A('s_bitcmp1_b32 s85, %d' % i)
        if opt.get('kh', 0):
            A('s_cselect_b32 exec_lo, -1, 0'); A('s_mov_b32 exec_hi, 0')
        else: A('s_cselect_b64 exec, -1, 0')
        A('buffer_load_dwordx4 %s, v5, s[32:35], s%d offen offset:%d sc1' % (vr(H + 4 * i, 4), 80 + (i >> 2), (i & 3) * 1024))
    A('s_mov_b64 exec, -1')
    if L0 == 2:
        assert opt.get('h1b', 0) == 1 and opt.get('h1f', 2) == 2 and opt.get('wf', 1)
        A('s_cmp_lg_u32 s13, 1')
        A('s_cbranch_scc1 L_noflz')
        wr_flush('z', True)
        A('s_mov_b32 s13, 1')
        A('L_noflz:')
    A('s_waitcnt vmcnt(16)')
    zmiss(85)
    A('s_bcnt1_i32_b32 s12, s85')
    A('s_cmp_le_u32 s12, %d' % TH1)
    A('s_cselect_b32 s87, 1, 0')
    A('s_cmp_lg_u32 s85, 0')
    A('s_waitcnt vmcnt(0)')
    A('s_cbranch_scc1 L_h1')
    A('v_msad_u8 v108, v%d, v63, 0' % H)
    A('v_msad_u8 v109, v%d, v63, 0' % (H + 4))
    for i in range(2, 16): A('v_msad_u8 v%d, v%d, v63, v%d' % (108 + (i & 1), H + 4 * i, 108 + (i & 1)))
    A('v_or_b32 v108, v108, v109')
    A('v_cmp_ne_u32 vcc, 0, v108')
    if opt.get('kh', 0): A('s_mov_b32 vcc_hi, 0')
    A('s_mov_b32 s85, 0xffff')
    A('s_cbranch_vccnz L_h1')
    A('L_h1ok:')
    A('s_waitcnt vmcnt(0)')
    woflag()
    H1F = opt.get('h1f', 2)
    def h1flag():
        A('v_mov_b32 v78, %d' % P_H1); A('v_mov_b32 v79, 1')
        A('s_mov_b64 exec, 1'); A('ds_write_b32 v78, v79'); A('s_mov_b64 exec, -1')
    if H1F == 0: h1flag()
    S.val(22, 13)
    S(9)
    for step in (32, 16, 8, 4):
        for k in range(step // 2):
            A('v_pk_add_f32 %s, %s, %s' % (vr(H + 2 * k, 2), vr(H + 2 * k, 2), vr(H + step + 2 * k, 2)))
    for mod in ('row_ror:1', 'row_ror:2', 'row_ror:4', 'row_ror:8'):
        for r in range(104, 108):
            A('v_add_f32_dpp v%d, v%d, v%d %s row_mask:0xf bank_mask:0xf' % (r, r, r, mod))
    A('v_cvt_pk_bf16_f32 v108, v%d, v%d' % (H, H + 1))
    A('v_cvt_pk_bf16_f32 v109, v%d, v%d' % (H + 2, H + 3))
    A('v_cvt_pk_bf16_f32 v112, v104, v105')
    A('v_cvt_pk_bf16_f32 v113, v106, v107')
    A('v_mov_b32 v110, v108'); A('v_mov_b32 v111, v109'); A('v_mov_b32 v114, v112'); A('v_mov_b32 v115, v113')
    A('''s_lshl_b32 s12, s19, 13
    s_lshl_b32 s13, s18, 9
    s_add_u32 s12, s12, s13
    s_add_u32 s12, s12, %d
    s_lshl_b32 s13, s19, %d
    s_lshl_b32 s80, s18, %d
    s_add_u32 s13, s13, s80
    s_add_u32 s13, s13, %d''' % (OFF_KVF, 4 + ZFL, ZFL, OFF_ZF))
    A('v_permlane32_swap_b32 v108, v110'); A('v_permlane32_swap_b32 v109, v111')
    A('v_permlane32_swap_b32 v112, v114'); A('v_permlane32_swap_b32 v113, v115')
    A('s_mov_b32 exec_hi, 0')
    A('buffer_store_dwordx4 v[108:111], v5, s[32:35], s12 offen sc1')
    A('s_mov_b32 exec_lo, %d' % (255 if ZF1 else 1))
    A('buffer_store_dwordx4 v[112:115], v5, s[32:35], s13 offen sc1')
    A('s_mov_b64 exec, -1')
    if H1F == 1: h1flag()
    if L0 == 1:
        S(10)
        wr_flush('z', True)
        if H1F == 2:
            A('s_waitcnt vmcnt(0)')
            h1flag()
        A('s_branch L_prepd')
    A('L_nohop:')
    S(10)
    moe_down('', 64, AC, False)
    if DQ and WP < 11 and not WR: wo_loop((WP, 11), 'b', 0 if WP else P_QD)
    if L0:
        assert PL == 1 and WR
        A('L_prepd:')
    elif PL == 1:
        A('s_cmp_lg_u32 s21, 0')
        A('s_cbranch_scc1 L_prepd')
        pb_prep(A, opt, 2)
        A('L_prepd:')
    A('s_mov_b32 s21, s4')
    A('s_mov_b32 s22, s5')
    own_first(A, 'l')
    if EB:
        if opt.get('eo', 1):
            A('s_cmp_lg_u32 s46, 0')
            A('s_cbranch_scc1 L_own')
            A('L_own_r2:')
        ldsgate(P_GB, 'b')
        A('v_mov_b32 v78, %d' % P_PASS); A('v_mov_b32 v79, 1')
        A('s_mov_b64 exec, 1'); A('ds_add_u32 v78, v79'); A('s_mov_b64 exec, -1')
        if opt.get('eo', 1): A('s_branch L_own_r0')
    if opt.get('ps', 0) in (1, 2): A('buffer_load_dword v%d, v8, s[32:35], s15 offen sc1' % FL0)
    if opt.get('ps', 0) == 2: A('s_waitcnt vmcnt(0)')
    if opt.get('wb', 0):
        if opt['wb'] == 1: A('s_cmp_eq_u32 s20, 4'); A('s_cbranch_scc1 L_phaseb')
        A.raw(';@CALL b')
    A('s_branch L_phaseb')
    for f in DEFER: f()

def compute(A, opt, S):
    for _ in range(opt.get('pc', 0)): A.raw('s_nop 0')
    if opt.get('cp', 0): A.raw(';@PAD %s %d' % (['', 'L_compute', 'L_c_noinit', 'L_c_loop', 'L_c_loop2', 'L_c_ta', 'L_c_wq', 'L_c_kz', 'L_phaseb'][opt['cp']], opt.get('co', 0)))
    A('L_compute:')
    if opt.get('prio', 1): A('s_setprio %d' % opt.get('prio', 1))
    if opt.get('wv', 0):
        NV = opt['nv']
        A('s_cmp_lg_u32 s20, %d' % (opt['wv'] - 1))
        A('s_cbranch_scc1 L_nowv')
        A('s_mul_i32 s12, s2, %d' % ((65536 + NV - 1) // NV))
        A('s_lshr_b32 s12, s12, 16')
        A('s_mul_i32 s12, s12, %d' % NV)
        A('s_sub_u32 s12, s2, s12')
        A('s_and_b32 s13, s19, 7')
        A('s_cmp_eq_u32 s13, 3')
        A('s_cselect_b32 s12, 0, s12')
        for v in range(NV):
            A('s_cmp_eq_u32 s12, %d' % v)
            A.raw(';@CCALL v%d' % v)
        for v in range(NV): A.raw(';@RET v%d' % v)
        A('L_nowv:')
    if opt.get('wk', 0):
        for n, w in (('c', opt['wk'] - 1), ('b', opt.get('wk2', opt['wk']) - 1)):
            A('s_cmp_eq_u32 s20, %d' % w)
            A.raw(';@CCALL %s' % n)
            A.raw(';@RET %s' % n)
    if opt.get('ct', 0):
        A('s_getpc_b64 s[12:13]')
        A('L_pc_c:')
        A('s_sub_u32 s12, s12, L_pc_c-%s_kernel' % NAME)
        A('s_subb_u32 s13, s13, 0')
        A('s_lshl_b32 s14, s17, 2')
        A('s_add_u32 s14, s14, s20')
        A('s_lshl_b32 s14, s14, 9')
        A('v_lshl_add_u32 v6, v2, 7, s14')
        A('v_min_u32 v6, L_end-%s_kernel, v6' % NAME)
        A('s_mov_b64 exec, 15')
        A('global_load_dword v19, v6, s[12:13]')
        A('s_mov_b64 exec, -1')
    A('''s_lshr_b32 s21, s20, 1
    s_and_b32 s22, s20, 1
    v_lshrrev_b32 v3, 5, v2
    v_and_b32 v4, 31, v2''')
    XA = 20; WA = 36
    A('''s_lshl_b32 s12, s21, 13
    v_lshlrev_b32 v6, 7, v4
    v_add_u32 v6, s12, v6
    v_bfe_u32 v7, v2, 1, 3''')
    for ss in range(4):
        A('v_add_u32 v8, %d, v3' % (ss * 2))
        A('v_xor_b32 v8, v8, v7')
        A('v_lshl_add_u32 v%d, v8, 4, v6' % (XA + ss))
    A('''v_lshlrev_b32 v6, 10, v3
    v_bfe_u32 v7, v2, 2, 2
    v_lshl_add_u32 v6, v7, 7, v6
    v_bfe_u32 v8, v2, 3, 1
    v_xor_b32 v8, s22, v8
    v_lshl_add_u32 v6, v8, 6, v6
    v_bfe_u32 v8, v2, 4, 1
    v_lshlrev_b32 v8, 5, v8
    v_and_b32 v9, 3, v2
    v_lshl_add_u32 v8, v9, 3, v8
    v_add_u32 v6, v6, v8
    v_add_u32 v%d, 16384, v6
    v_lshl_add_u32 v7, v3, 2, v7
    v_lshl_add_u32 v12, v7, 6, v8
    s_lshl_b32 s12, s22, 11
    s_add_u32 s12, s12, %d
    v_add_u32 v12, s12, v12''' % (WA, P_PHI))
    M16 = opt.get('m16', 0)
    if M16:
        A('''s_lshl_b32 s12, s21, 13
        v_and_b32 v6, 15, v2
        v_lshlrev_b32 v6, 7, v6
        v_add_u32 v6, s12, v6
        v_lshrrev_b32 v7, 4, v2
        v_bfe_u32 v8, v2, 1, 3
        v_xor_b32 v8, v8, v7
        v_lshl_add_u32 v20, v8, 4, v6
        v_xor_b32 v21, 64, v20
        v_lshlrev_b32 v6, 10, v7
        v_bfe_u32 v8, v2, 2, 2
        v_lshl_add_u32 v6, v8, 7, v6
        v_bfe_u32 v8, v2, 3, 1
        v_xor_b32 v8, s22, v8
        v_lshl_add_u32 v6, v8, 6, v6
        v_and_b32 v8, 1, v7
        v_lshl_add_u32 v6, v8, 5, v6
        v_add_u32 v6, %d, v6
        v_and_b32 v8, 3, v2
        v_lshl_add_u32 v38, v8, 3, v6
        v_xor_b32 v39, 32, v38
        v_and_b32 v8, 1, v2
        v_lshl_add_u32 v6, v8, 4, v6
        v_bfe_u32 v8, v2, 1, 1
        v_lshl_add_u32 v36, v8, 3, v6
        v_xor_b32 v37, 32, v36''' % (65536 if R4 else 16384))
        if R4:
            A('v_mov_b32 v34, v36'); A('v_mov_b32 v35, v37')
    AQ = [160, 176]; AK = [192, 208]; AV = [224, 240]
    PHI = 40; ID = 48; ONA = 56; ONB = 60
    A('''v_lshlrev_b32 v6, 14, v3
    v_lshl_add_u32 v6, v4, 4, v6
    v_lshlrev_b32 v7, %d, v3
    s_lshl_b32 s12, s22, 3
    s_lshl_b32 s13, s21, 2
    s_add_u32 s12, s12, s13               ; piece0 = hw*8 + rw*4
    s_lshl_b32 s13, s12, 14
    s_lshl_b32 s14, s19, 18
    s_add_u32 s13, s13, s14
    s_lshl_b32 s14, s18, 10
    s_add_u32 s13, s13, s14
    s_add_u32 s40, s13, %d
    s_add_u32 s41, s40, 32768
    s_lshl_b32 s13, s12, %d
    s_lshl_b32 s14, s19, %d
    s_add_u32 s13, s13, s14
    s_lshl_b32 s14, s18, %d
    s_add_u32 s13, s13, s14
    s_add_u32 s42, s13, %d
    s_add_u32 s43, s42, %d
    s_lshl_b32 s13, s21, 4
    s_lshl_b32 s44, 1, s13                ; lane mask of own-t z lanes
    s_xor_b32 s13, s13, 16
    s_lshl_b32 s45, 1, s13                ; other-t''' % (4 + ZSL, OFF_KVP, 4 + ZSL, 8 + ZSL, ZSL, OFF_ZP, 2 << (4 + ZSL)))
    if ZP1:
        A('''s_lshl_b32 s13, s22, 1
        s_add_u32 s13, s13, s21
        s_lshl_b32 s13, s13, 11
        s_lshl_b32 s14, s19, 13
        s_add_u32 s13, s13, s14
        s_lshl_b32 s14, s18, 7
        s_add_u32 s13, s13, s14
        s_add_u32 s42, s13, %d
        s_mov_b32 s45, 0x10001
        v_lshlrev_b32 v7, 2, v2''' % OFF_ZP)
    for r in range(68, 72): A('v_mov_b32 v%d, 0' % r)
    for r in range(160, 256): A('v_mov_b32 v%d, 0' % r)
    A('v_lshlrev_b32 v8, 2, v3')
    A('v_sub_u32 v8, v4, v8')
    A('v_mov_b32 v9, 0x3f80')
    A('v_mov_b32 v10, 0x3f800000')
    for m in range(2):
        for rj in range(4):
            c = 16 * m + (rj >> 1) * 8 + (rj & 1) * 2
            A('v_cmp_eq_u32 vcc, %d, v8' % c)
            A('v_cndmask_b32 v11, 0, v9, vcc')
            A('v_cmp_eq_u32 vcc, %d, v8' % (c + 1))
            A('v_cndmask_b32 v%d, v11, v10, vcc' % (ID + m * 4 + rj))
    A('v_mov_b32 v9, 0x3f803f80')
    A('v_cmp_gt_u32 vcc, 16, v4')
    for i in range(4):
        A('v_cndmask_b32 v%d, 0, v9, vcc' % (ONA + i))
        A('v_cndmask_b32 v%d, v9, 0, vcc' % (ONB + i))
    A('s_waitcnt lgkmcnt(0)')
    srd(A, 32, 62, WS_BYTES)
    srd(A, 24, 4, 4 << 20)
    A('s_cmp_lg_u32 s20, 0')
    A('s_cbranch_scc1 L_c_noinit')
    A('v_add_u32 v8, %d, v5' % P_FL)
    A('s_mov_b64 exec, 0xffff')
    A('ds_write_b128 v8, v[68:71]')
    A('s_mov_b64 exec, -1')
    A('s_cmp_lg_u32 s2, 0')
    A('s_cbranch_scc1 L_c_noinit')
    srd(A, 72, 60, 256)
    A('s_memrealtime s[14:15]')
    A('s_waitcnt lgkmcnt(0)')
    A('s_mul_i32 s14, s14, 0x9e3779b1')
    A('s_or_b32 s14, s14, 0x01010101')
    A('v_mov_b32 v8, s14')
    A('s_mov_b64 exec, 1')
    A('buffer_store_dword v8, v68, s[72:75], 0 offen offset:4 sc1')
    S.pub()
    A('s_mov_b64 exec, -1')
    A('L_c_noinit:')
    XSC = DQ_SCR if opt.get('dq', 0) else SCR
    A('''s_lshl_b32 s14, s22, 1
    s_add_u32 s15, s14, s21
    s_xor_b32 s14, s15, 1
    s_mul_i32 s14, s14, 4352
    s_mul_i32 s15, s15, 4352
    s_add_u32 s14, s14, %d
    s_add_u32 s15, s15, %d
    v_add_u32 v8, s14, v5
    v_add_u32 v9, s15, v5
    v_lshlrev_b32 v11, 4, v3
    v_add_u32 v10, s14, v11
    v_add_u32 v11, s15, v11
    s_lshl_b32 s14, s20, 2
    s_add_u32 s15, s14, %d
    v_mov_b32 v13, s15
    v_xor_b32 v14, 8, v13
    v_subrev_u32 v17, 16, v13
    v_mov_b32 v15, 1''' % (XSC, XSC, P_XF))
    if ZP1:
        A('''v_bfe_u32 v16, v2, 4, 1
        v_cmp_eq_u32 vcc, s21, v16
        v_cndmask_b32 v10, v10, v11, vcc
        s_lshl_b32 s14, s21, 7
        v_add_u32 v10, s14, v10
        v_lshrrev_b32 v11, 2, v5
        v_sub_u32 v16, v9, v5
        v_add_u32 v11, v16, v11''')
    SETS = [dict(x0=100, x1=104, wq=108, wk=112, wv=116), dict(x0=120, x1=124, wq=128, wk=132, wv=136)]
    def reads(ss, Sx):
        o = ss * 2048
        return [
            'ds_read_b128 %s, v%d' % (vr(Sx['x0'], 4), XA + ss),
            'ds_read_b64_tr_b16 %s, v%d offset:%d' % (vr(Sx['wq'], 2), WA, o),
            'ds_read_b64_tr_b16 %s, v%d offset:%d' % (vr(Sx['wq'] + 2, 2), WA, o + 512),
            'ds_read_b128 %s, v%d offset:4096' % (vr(Sx['x1'], 4), XA + ss),
            'ds_read_b64_tr_b16 %s, v%d offset:%d' % (vr(Sx['wk'], 2), WA, 8192 + o),
            'ds_read_b64_tr_b16 %s, v%d offset:%d' % (vr(Sx['wk'] + 2, 2), WA, 8192 + o + 512),
            'ds_read_b64_tr_b16 %s, v%d offset:%d' % (vr(Sx['wv'], 2), WA, 16384 + o),
            'ds_read_b64_tr_b16 %s, v%d offset:%d' % (vr(Sx['wv'] + 2, 2), WA, 16384 + o + 512),
        ]
    def m(acc, a_, b_):
        return 'v_mfma_f32_32x32x16_bf16 %s, %s, %s, %s' % (vr(acc, 16), vr(a_, 4), vr(b_, 4), vr(acc, 16))
    A('s_waitcnt lgkmcnt(0)')
    S.role = 1
    S(0)
    A('s_barrier')
    S(1)
    def last_extras():
        A('s_mov_b64 exec, 1')
        A('ds_write_b32 v17, v15')
        A('s_mov_b64 exec, -1')
        for mm in range(2):
            for jj in range(2):
                A('ds_read_b64_tr_b16 %s, v12 offset:%d' % (vr(PHI + mm * 4 + jj * 2, 2), mm * 1024 + jj * 512))
        A('v_mov_b32 v16, %d' % P_SEL)
        A('ds_read_b96 v[24:26], v16')
    if M16:
        SB = [80, 120]
        def rd16(ks):
            b = SB[ks]; L = []
            def w(k):
                mat, mt = k >> 1, k & 1
                a = (34 + 2 * mat if R4 else 38 if mat == 2 else 36) + mt
                return [('W%d' % k, 'ds_read_b64_tr_b16 %s, v%d offset:%d' % (vr(b + 16 + 4 * k + 2 * jj, 2), a, mat * 8192 + ks * 4096 + jj * 512)) for jj in range(2)]
            def x(n): return [('X%d' % n, 'ds_read_b128 %s, v%d offset:%d' % (vr(b + 4 * n, 4), 20 + ks, n * 2048))]
            L = w(0) + x(0) + x(1) + x(2) + x(3) + w(1) + w(2) + w(3) + w(4) + w(5)
            return [((ks, t), i) for t, i in L]
        def mf16(ks, g):
            b = SB[ks]; k, n = g >> 2, g & 3
            mat, mt = k >> 1, k & 1
            xr = b + 4 * n; wr = b + 16 + 4 * k
            if mat < 2:
                acc = (AQ, AK)[mat][n >> 1] + 8 * mt + 4 * (n & 1)
                a_, b_ = wr, xr
            else:
                acc = AV[n >> 1] + 8 * (n & 1) + 4 * mt
                a_, b_ = xr, wr
            return 'v_mfma_f32_16x16x32_bf16 %s, %s, %s, %s' % (vr(acc, 4), vr(a_, 4), vr(b_, 4), vr(acc, 4)), [(ks, 'X%d' % n), (ks, 'W%d' % k)]
        PB = opt.get('pb', 36)
        R0G = {PB: 3, PB + 1: 2, PB + 2: 2}
        n0 = 7; gg = PB + 3
        while n0 < 16:
            k = max(1, -(-(16 - n0) // (48 - gg))); R0G[gg] = k; n0 += k; gg += 1
        R1S = opt.get('r1s', 2); R1E = opt.get('r1e', 24)
        R1G = {}
        for i in range(16):
            g = R1S + (i * (R1E - R1S)) // 16
            R1G[g] = R1G.get(g, 0) + 1
        Q = []
        for t, i in rd16(0): A(i); Q.append(t)
        Q0 = list(Q)
        A('s_mov_b32 s48, 0')
        A('s_mov_b32 s49, 0')
        R4M = {}
        if R4:
            A('s_mov_b32 s64, 0x8888')
            for k in range(1, 4): A('s_mov_b32 s%d, 0x%x' % (64 + k, sum(1 << t for t in range(16) if (3 * t + k - 1) % 11 + 3 >= 11)))
            A('s_mov_b32 s70, 16384'); A('s_mov_b32 s71, 24576')
        A.raw('.p2align 3')
        A('L_c_loop:')
        def stage16(last):
            r0 = rd16(0); r1 = rd16(1)
            for G in range(48):
                ks, g = G // 24, G % 24
                txt, need = mf16(ks, g)
                if R4 and not last and G in (1, 5, 9, 13):
                    k = G >> 2
                    if k == 0: msk, inc, wrap = 0x8888, 16384, 65536
                    else: msk, inc, wrap = sum(1 << t for t in range(16) if (3 * t + k - 1) % 11 + 3 >= 11), 24576, 90112
                    A('s_bitcmp1_b32 s%d, s48' % (64 + k))
                    A('s_cselect_b32 s%d, 0x%x, s%d' % (50 + k, (inc - wrap) & 0xffffffff, 70 + min(k, 1)))
                    R4M[k] = msk
                if G == 1 and not last and not R4:
                    A('s_add_u32 s49, s49, 1')
                    A('s_cmp_eq_u32 s49, %d' % NS)
                    A('s_mov_b32 s50, %d' % STAGE)
                    A('s_cselect_b32 s50, %d, s50' % ((-(NS - 1) * STAGE) & 0xffffffff))
                    A('s_cselect_b32 s49, 0, s49')
                idx = [i for i, t in enumerate(Q) if t in need]
                if G == PB and Q: idx = [len(Q) - 1]
                if idx:
                    lastq = max(idx)
                    A('s_waitcnt lgkmcnt(%d)' % min(15, len(Q) - 1 - lastq))
                    del Q[:lastq + 1]
                A(txt)
                if G == PB:
                    if opt.get('ds', 0):
                        A('s_mov_b32 m0, s48'); A('v_writelane_b32 v30, s98, m0'); A('v_writelane_b32 v31, s100, m0')
                        A('s_memtime s[98:99]')
                    if not last: A('s_barrier')
                    if opt.get('ds', 0): A('s_memtime s[100:101]')
                    if last: last_extras()
                for z in range(R1G.get(G, 0)):
                    t, i = r1.pop(0); A(i); Q.append(t)
                if not last:
                    for z in range(R0G.get(G, 0)):
                        t, i = r0.pop(0); A(i); Q.append(t)
                    UA = opt.get('ua', 26)
                    if R4:
                        if UA <= G < UA + 8:
                            r = [20, 21, 34, 35, 36, 37, 38, 39][G - UA]
                            A('v_add_u32 v%d, s%d, v%d' % (r, 50 + (G - UA) // 2, r))
                    elif UA <= G < UA + 6:
                        r = [20, 21, 36, 37, 38, 39][G - UA]
                        A('v_add_u32 v%d, s50, v%d' % (r, r))
                    if G == 46:
                        A('s_add_u32 s48, s48, 1')
                        A('s_cmp_lt_u32 s48, 15')
                    if G == 47: A('s_cbranch_scc1 L_c_loop')
            assert not r1 and (last or not r0)
        stage16(False)
        assert Q == Q0, Q
        stage16(True)
    else:
        for x in reads(0, SETS[0]): A(x)
        A('s_mov_b32 s48, 0')
        A('s_mov_b32 s49, 0')
        DQ = opt.get('dq', 0)
        assert DQ <= 5
        for z in range(DQ - 1):
            t = 16 - DQ + z
            A('s_mov_b32 s%d, %d' % (64 + z, (DQ_X[t + 1] - DQ_X[t]) & 0xffffffff))
        A.raw('.p2align 3')
        A('L_c_loop:')
    G = {0: [2, 1, 1, 2, 1, 1], 1: [2, 1, 1, 2, 1, 1], 2: [3, 3, 2, 0, 0, 0], 3: [3, 3, 2, 0, 0, 0]}
    Q = [(0, i) for i in range(8)]
    NEED = [(0, 1, 2), (3,), (4, 5), (), (6, 7), ()]
    DQ = opt.get('dq', 0)
    def XADDR(t): return DQ_X[t] if (t >= 16 - DQ and t in DQ_X) else (t % NS) * STAGE
    def stage_nq(last, lab, end):
        ORD = [0, 4, 5, 3, 6, 7]
        GN = {0: [2, 2, 1, 1], 1: [2, 2, 1, 1], 2: [3, 3, 0, 0], 3: [3, 3, 0, 0]}
        NEEDN = [(0, 4, 5), (3,), (6, 7), ()]
        for ss in range(4):
            Sx = SETS[ss & 1]; N = SETS[(ss + 1) & 1]
            M = [m(AK[0], Sx['wk'], Sx['x0']), m(AK[1], Sx['wk'], Sx['x1']), m(AV[0], Sx['x0'], Sx['wv']), m(AV[1], Sx['x1'], Sx['wv'])]
            nr = reads((ss + 1) & 3, N); k = 0
            if ss == 0 and not last:
                A('s_add_u32 s49, s49, 1')
                A('s_cmp_eq_u32 s49, %d' % NS)
                A('s_mov_b32 s50, %d' % STAGE)
                A('s_cselect_b32 s50, %d, s50' % ((-(NS - 1) * STAGE) & 0xffffffff))
                A('s_cselect_b32 s49, 0, s49')
                A('s_mov_b32 s51, s64')
                for z in range(64, 64 + min(DQ, 5) - 2): A('s_mov_b32 s%d, s%d' % (z, z + 1))
            for g in range(4):
                idx = [Q.index((ss, i)) for i in NEEDN[g] if (ss, i) in Q]
                bar = ss == 3 and g == 0
                if bar: idx = [len(Q) - 1] if Q else []
                if idx:
                    lastq = max(idx)
                    A('s_waitcnt lgkmcnt(%d)' % (len(Q) - 1 - lastq))
                    del Q[:lastq + 1]
                A(M[g])
                if bar and not last: A('s_barrier')
                if bar and last: last_extras()
                if not (ss == 3 and last):
                    for z in range(GN[ss][g]):
                        A(nr[ORD[k]]); Q.append(((ss + 1) & 3, ORD[k])); k += 1
                if not last:
                    if ss == 0 and g == 3: A('v_add_u32 v%d, s51, v%d' % (XA, XA))
                    if ss < 3 and g == 2: A('v_add_u32 v%d, s51, v%d' % (XA + ss + 1, XA + ss + 1))
                    if ss == 2 and g == 3: A('v_add_u32 v%d, s50, v%d' % (WA, WA))
                    if ss == 3 and g == 2:
                        A('s_add_u32 s48, s48, 1')
                        A('s_cmp_lt_u32 s48, %d' % end)
                    if ss == 3 and g == 3:
                        A('s_cbranch_scc1 %s' % lab)
    def stage(last):
        for ss in range(4):
            Sx = SETS[ss & 1]; N = SETS[(ss + 1) & 1]
            M = [m(AQ[0], Sx['wq'], Sx['x0']), m(AQ[1], Sx['wq'], Sx['x1']), m(AK[0], Sx['wk'], Sx['x0']), m(AK[1], Sx['wk'], Sx['x1']),
                 m(AV[0], Sx['x0'], Sx['wv']), m(AV[1], Sx['x1'], Sx['wv'])]
            nr = reads((ss + 1) & 3, N); k = 0
            if ss == 0 and not last:
                A('s_add_u32 s49, s49, 1')
                A('s_cmp_eq_u32 s49, %d' % NS)
                A('s_mov_b32 s50, %d' % STAGE)
                A('s_cselect_b32 s50, %d, s50' % ((-(NS - 1) * STAGE) & 0xffffffff))
                A('s_cselect_b32 s49, 0, s49')
                if DQ:
                    A('s_cmp_eq_u32 s48, %d' % (15 - DQ))
                    A('s_cselect_b32 s51, %d, s50' % ((XADDR(16 - DQ) - XADDR(15 - DQ)) & 0xffffffff))
            for g in range(6):
                idx = [Q.index((ss, i)) for i in NEED[g] if (ss, i) in Q]
                bar = ss == 3 and g == 0
                if bar: idx = [len(Q) - 1] if Q else []
                if idx:
                    lastq = max(idx)
                    A('s_waitcnt lgkmcnt(%d)%s' % (len(Q) - 1 - lastq, ''))
                    del Q[:lastq + 1]
                A(M[g])
                if bar and opt.get('ds', 0):
                    A('s_mov_b32 m0, s48'); A('v_writelane_b32 v30, s98, m0'); A('v_writelane_b32 v31, s100, m0')
                    A('s_memtime s[98:99]')
                if bar and not last: A('s_barrier')
                if bar and opt.get('ds', 0): A('s_memtime s[100:101]')
                if bar and last:
                    A('s_mov_b64 exec, 1')
                    A('ds_write_b32 v17, v15')
                    A('s_mov_b64 exec, -1')
                    for mm in range(2):
                        for jj in range(2):
                            A('ds_read_b64_tr_b16 %s, v12 offset:%d' % (vr(PHI + mm * 4 + jj * 2, 2), mm * 1024 + jj * 512))
                    A('ds_read_b96 v[24:26], v17 offset:%d' % 0) if False else None
                    A('v_mov_b32 v16, %d' % P_SEL)
                    A('ds_read_b96 v[24:26], v16')
                if not (ss == 3 and last):
                    for z in range(G[ss][g]):
                        A(nr[k]); Q.append(((ss + 1) & 3, k)); k += 1
                if not last:
                    if ss == 0 and g == 5: A('v_add_u32 v%d, s%d, v%d' % (XA, 51 if DQ else 50, XA))
                    if ss < 3 and g == 4: A('v_add_u32 v%d, s%d, v%d' % (XA + ss + 1, 51 if DQ else 50, XA + ss + 1))
                    if ss == 2 and g == 5: A('v_add_u32 v%d, s50, v%d' % (WA, WA))
                    if ss == 3 and g == 4:
                        A('s_add_u32 s48, s48, 1')
                        A('s_cmp_lt_u32 s48, %d' % (16 - DQ if DQ else 15))
                    if ss == 3 and g == 5:
                        A('s_cbranch_scc1 L_c_loop')
    if not M16:
        stage(False)
        assert Q == [(0, i) for i in range(8)], Q
        if DQ:
            if DQ > 1:
                Q[:] = [(0, i) for i in [0, 4, 5, 3, 6, 7]]
                A('s_waitcnt lgkmcnt(2)')
                A.raw('.p2align 3')
                A('L_c_loop2:')
                stage_nq(False, 'L_c_loop2', 15)
                assert Q == [(0, i) for i in [0, 4, 5, 3, 6, 7]], Q
            else:
                Q[:] = [(0, i) for i in [0, 4, 5, 3, 6, 7]]
                A('s_waitcnt lgkmcnt(2)')
            stage_nq(True, None, 0)
        else: stage(True)
    A.raw('L_c_ta:')
    A.raw(';@REG c')
    S(2)
    if opt.get('ds', 0):
        A('s_lshl_b32 s98, s20, 8'); A('s_add_u32 s98, s98, s2'); A('s_lshl_b32 s98, s98, 10')
        A('s_add_u32 s98, s98, %d' % (OFF_ST + (1 << 20)))
        A('v_lshlrev_b32 v29, 2, v2')
        for k in range(2): A('buffer_store_dword v%d, v29, s[32:35], s98 offen offset:%d' % (30 + k, 256 * k))
    KB = [64, 72]; VB = [80, 88]; MB = [96, 104]; EMS = [112, 128]; TMP = 144
    KV = [112, 128]; Z = 144
    A('s_mov_b32 s48, 0x3fb8aa3b')
    A('s_mov_b32 s52, 0xbfb8aa3b')
    def cvt(dst, src):
        for i in range(8):
            A('v_cvt_pk_bf16_f32 v%d, v%d, v%d' % (dst + i, src + 2 * i, src + 2 * i + 1))
    def mm2(d, a_, b_, c0, same_b=False):
        A('v_mfma_f32_32x32x16_bf16 %s, %s, %s, %s' % (vr(d, 16), vr(a_, 4), vr(b_, 4), '0' if c0 else vr(d, 16)))
        A('v_mfma_f32_32x32x16_bf16 %s, %s, %s, %s' % (vr(d, 16), vr(a_ + 4, 4), vr(b_ + (0 if same_b else 4), 4), vr(d, 16)))
    def cvt16(dst, src, v=False):
        cvt(dst, src)
        if M16:
            for mm in range(2):
                for j in range(2): A('v_permlane16_swap_b32 v%d, v%d' % (dst + 4 * mm + j, dst + 4 * mm + 2 + j))
            if v:
                for mm in range(2):
                    for j in range(2): A('v_permlane32_swap_b32 v%d, v%d' % (dst + 4 * mm + j, dst + 4 * mm + 2 + j))
    cvt16(KB[0], AK[0])
    A('s_waitcnt lgkmcnt(0)')
    mm2(AK[0], PHI, KB[0], True)
    cvt16(KB[1], AK[1]); mm2(AK[1], PHI, KB[1], True)
    A('v_readfirstlane_b32 s72, v24'); A('v_readfirstlane_b32 s73, v25'); A('v_readfirstlane_b32 s74, v26')
    A('v_and_b32 v27, 3, v2')
    A('v_lshlrev_b32 v27, 3, v27')
    A('v_bfe_u32 v27, v26, v27, 8')
    A('v_mov_b32 v28, 0xffffff00')
    tag_bytes(A, 76, 74)
    cvt16(VB[0], AV[0], True); cvt16(VB[1], AV[1], True)
    KO = opt.get('ko', 1)
    XT = 192; ZT = 208
    class Rec:
        def __init__(self): self.l = []
        def __call__(self, t): self.l += [x.strip() for x in t.split('\n') if x.strip()]
    def mf(d, a_, b_, c0=False):
        return 'v_mfma_f32_32x32x16_bf16 %s, %s, %s, %s' % (vr(d, 16), vr(a_, 4), vr(b_, 4), '0' if c0 else vr(d, 16))
    def mm2l(d, a_, b_, c0, same_b=False): return [mf(d, a_, b_, c0), mf(d, a_ + 4, b_ + (0 if same_b else 4))]
    def cvtl(dst, src): return ['v_cvt_pk_bf16_f32 v%d, v%d, v%d' % (dst + i, src + 2 * i, src + 2 * i + 1) for i in range(8)]
    def mix(mfs, val, gap):
        val = list(val)
        for x in mfs:
            A(x)
            for y in val[:gap]: A(y)
            val = val[gap:]
        for y in val: A(y)
    if KO:
        KV = [112, 192]; Z = 224; XT = 128; ZT = 144
        cvt(KB[0], AK[0]); unpack(A, AK[0], KB[0])
        softmax_pm(A, AK[0], AV[0], EMS[0], KB[0], MB[0], tmp=TMP, sL=48, sNL=52)
        R = Rec(); R('\n'.join(cvtl(KB[1], AK[1]))); unpack(R, AK[1], KB[1])
        softmax_pm(R, AK[1], AV[1], EMS[1], KB[1], MB[1], tmp=TMP, sL=48, sNL=52)
        L = R.l
        i_fma = [i for i, x in enumerate(L) if x.startswith('v_pk_fma')][0]
        i_exp = [i for i, x in enumerate(L) if x.startswith('v_exp')][0]
        i_cvt = [i for i, x in enumerate(L) if x.startswith('v_cvt') and i > i_exp][0]
        G1 = opt.get('kg1', 7); G2 = opt.get('kg2', 4)
        mix(mm2l(AK[0], KB[0], ID, True) + mm2l(AV[0], MB[0], ID, True), L[:i_fma], G1)
        for x in L[i_fma:i_exp]: A(x)
        for x in cvtl(KB[0], AK[0]) + cvtl(MB[0], AV[0]): A(x)
        mix(mm2l(KV[0], KB[0], VB[0], True) + mm2l(KV[1], MB[0], VB[0], True) + mm2l(Z, KB[0], ONA, True, True) + mm2l(Z, MB[0], ONB, False, True),
            L[i_exp:i_exp + 32], G2)
        for x in L[i_exp + 32:i_cvt]: A(x)
        FIN = [L[i_cvt::2], L[i_cvt + 1::2]]
    else:
        for u in range(2):
            cvt(KB[u], AK[u]); unpack(A, AK[u], KB[u])
        for u in range(2):
            softmax_pm(A, AK[u], AV[u], EMS[u], KB[u], MB[u], tmp=TMP, sL=48, sNL=52)
            mm2(AK[u], KB[u], ID, True)
            mm2(AV[u], MB[u], ID, True)
        for u in range(2):
            cvt(KB[u], AK[u]); cvt(MB[u], AV[u])
            mm2(KV[0], KB[u], VB[u], u == 0)
            mm2(KV[1], MB[u], VB[u], u == 0)
            mm2(Z, KB[u], ONA, u == 0, True)
            mm2(Z, MB[u], ONB, False, True)
        S(3)
    for rw in range(2):
        if rw == 0:
            A('s_cmp_eq_u32 s21, 0')
            A('s_cbranch_scc0 L_c_rw1')
        else:
            A('L_c_rw1:')
            A('s_nop %d' % (1 if KO else 7))
        o = 1 - rw
        kvw = ['ds_write_b128 v8, %s offset:%d' % (vr(KV[o] + q * 4, 4), q * 1024) for q in range(4)]
        if KO:
            BK = [KB[1], MB[1]]; TT = [AK[1], AV[1]]; ON = [ONA, ONB]
            if o == 1: TT = [AV[1], AK[1]]
            for x in FIN[o]: A(x)
            mix(mm2l(TT[o], BK[o], ID, True), FIN[rw], 4)
            mix(mm2l(TT[rw], BK[rw], ID, True), [], 0)
            for x in cvtl(BK[o], TT[o]): A(x)
            mix(mm2l(KV[o], BK[o], VB[1], False), cvtl(BK[rw], TT[rw]), 4)
            mix(mm2l(Z, BK[o], ON[o], False, True) + mm2l(Z, BK[rw], ON[rw], False, True), ['s_nop 0'] + kvw, 1)
            mix(mm2l(KV[rw], BK[rw], VB[1], False), [], 0)
            S(3)
        else:
            for x in kvw: A(x)
        A('s_mov_b32 exec_lo, s45'); A('s_mov_b32 exec_hi, s45')
        for q in range(4):
            A('ds_write_b128 v10, %s offset:%d' % (vr(Z + q * 4, 4), 4096 + q * 32))
        A('ds_write_b32 v13, v15')
        A('s_mov_b64 exec, -1')
        A('s_mov_b32 s13, 0')
        A('L_c_x%d:' % rw)
        A('ds_read_b32 v16, v14')
        for q in range(4):
            A('ds_read_b128 %s, v9 offset:%d' % (vr(XT + q * 4, 4), q * 1024))
        NZ = 2 if ZP1 else 4
        assert ZP1 or not KO
        if ZP1:
            A('ds_read_b32 v%d, v11 offset:4096' % ZT)
            A('ds_read_b32 v%d, v11 offset:4224' % (ZT + 1))
        else:
            for q in range(4):
                A('ds_read_b128 %s, v11 offset:%d' % (vr(208 + q * 4, 4), 4096 + q * 32))
        A('s_add_u32 s13, s13, 1')
        A('s_cmp_ge_u32 s13, %d' % SPIN_L)
        A('s_cbranch_scc1 L_c_y%d' % rw)
        A('s_waitcnt lgkmcnt(%d)' % (4 + NZ))
        A('v_cmp_eq_u32 vcc, 1, v16')
        A('s_cbranch_vccz L_c_x%d' % rw)
        A('L_c_y%d:' % rw)
        A('s_waitcnt lgkmcnt(%d)' % NZ)
        if opt.get('xs', 0): S.rt(22); S.val(22, 13)
        for r in range(8):
            A('v_pk_add_f32 %s, %s, %s' % (vr(KV[rw] + 2 * r, 2), vr(KV[rw] + 2 * r, 2), vr(XT + 2 * r, 2)))
        for q in range(4):
            A('v_and_or_b32 v%d, v%d, v28, v27' % (KV[rw] + q * 4, KV[rw] + q * 4))
            if not (opt.get('kh', 0) and (q & 1)): A('buffer_store_dwordx4 %s, v6, s[32:35], s%d offen offset:%d sc1' % (vr(KV[rw] + q * 4, 4), 40 + (q >> 1), (q & 1) * 512))
        if rw == 0:
            A('s_branch L_c_zs')
    A('L_c_zs:')
    if opt.get('xs', 0): S.rt(23)
    A('s_waitcnt lgkmcnt(0)')
    if ZP1:
        A('v_add_f32 v%d, v%d, v%d' % (ZT, ZT, ZT + 1))
        A('v_and_or_b32 v%d, v%d, v28, v27' % (ZT, ZT))
        A('s_mov_b32 exec_hi, 0')
        A('buffer_store_dword v%d, v7, s[32:35], s42 offen sc1' % ZT)
        A('s_mov_b32 exec_lo, 1')
    else:
        for r in range(8):
            A('v_pk_add_f32 %s, %s, %s' % (vr(Z + 2 * r, 2), vr(Z + 2 * r, 2), vr(208 + 2 * r, 2)))
        for r in range(16):
            A('v_and_or_b32 v%d, v%d, v28, s%d' % (Z + r, Z + r, 76 + (r & 3)))
        A('s_mov_b32 exec_lo, s44'); A('s_mov_b32 exec_hi, s44')
        for q in range(4):
            A('buffer_store_dwordx4 %s, v7, s[32:35], s%d offen offset:%d sc1' % (vr(Z + q * 4, 4), 42 + (q >> 1), (q & 1) * 16))
    A('ds_write_b32 v13, v15 offset:%d' % (P_KS - P_XF))
    A('s_mov_b64 exec, -1')
    S(4)
    if DQ:
        A('v_mov_b32 v16, %d' % P_WQ)
        A('s_mov_b32 s13, 0')
        A('L_c_wq:')
        A('ds_read_b128 v[64:67], v16')
        A('s_add_u32 s13, s13, 1')
        A('s_cmp_ge_u32 s13, %d' % SPIN_L)
        A('s_cbranch_scc1 L_c_wqok')
        A('s_waitcnt lgkmcnt(0)')
        A('v_and_b32 v64, v64, v65')
        A('v_and_b32 v66, v66, v67')
        A('v_and_b32 v64, v64, v66')
        A('v_cmp_eq_u32 vcc, 1, v64')
        A('s_cbranch_vccz L_c_wq')
        A('L_c_wqok:')
        A('s_waitcnt lgkmcnt(0)')
        sts = list(range(15, 15 - DQ, -1))
        steps = [(st, ss) for st in sts for ss in range(4)]
        QD = opt.get('qd', 3)
        curx = [0] * 4; curw = [16384]
        def qrd(n):
            st, ss = steps[n]; b = 64 + 12 * (n & 3)
            if curx[ss] != DQ_X[st]:
                A('v_add_u32 v%d, 0x%x, v%d' % (XA + ss, (DQ_X[st] - curx[ss]) & 0xffffffff, XA + ss)); curx[ss] = DQ_X[st]
            if curw[0] != DQ_W[st]:
                A('v_add_u32 v%d, 0x%x, v%d' % (WA, (DQ_W[st] - curw[0]) & 0xffffffff, WA)); curw[0] = DQ_W[st]
            A('ds_read_b64_tr_b16 %s, v%d offset:%d' % (vr(b + 8, 2), WA, ss * 2048))
            A('ds_read_b64_tr_b16 %s, v%d offset:%d' % (vr(b + 10, 2), WA, ss * 2048 + 512))
            A('ds_read_b128 %s, v%d' % (vr(b, 4), XA + ss))
            A('ds_read_b128 %s, v%d offset:4096' % (vr(b + 4, 4), XA + ss))
        for n in range(QD): qrd(n)
        for n in range(len(steps)):
            b = 64 + 12 * (n & 3)
            later = min(len(steps) - 1, n + QD - 1) - n
            A('s_waitcnt lgkmcnt(%d)' % (4 * later + 1))
            A(m(AQ[0], b + 8, b))
            A('s_waitcnt lgkmcnt(%d)' % (4 * later))
            A(m(AQ[1], b + 8, b + 4))
            if n + QD < len(steps): qrd(n + QD)
            if opt.get('h1w', 2) == 4 and n == opt.get('qm', 10):
                A('s_mov_b64 exec, 1')
                A('ds_write_b32 v13, v15 offset:%d' % (P_QM - P_XF))
                A('s_mov_b64 exec, -1')
        A('s_mov_b64 exec, 1')
        A('ds_write_b32 v13, v15 offset:%d' % (P_QD - P_XF))
        A('s_mov_b64 exec, -1')
        S.rt(19)
    QB = [64, 72]; QP = [80, 96]; QM = [88, 104]; TQ = 24
    cvt16(QB[0], AQ[0]); mm2(AQ[0], PHI, QB[0], True)
    cvt16(QB[1], AQ[1]); mm2(AQ[1], PHI, QB[1], True)
    for u in range(2):
        cvt(QB[u], AQ[u]); unpack(A, AQ[u], QB[u])
    for u in range(2):
        softmax_pm(A, AQ[u], AK[u], AV[u], QP[u], QM[u], tmp=TQ, sL=48, sNL=52)
    S(5)
    A('''s_lshl_b32 s12, s19, 1
    s_add_u32 s23, s12, s22               ; h
    s_lshl_b32 s12, s23, 12
    s_add_u32 s43, s12, %d
    s_lshl_b32 s14, s23, %d
    s_add_u32 s46, s14, %d
    v_lshlrev_b32 v52, %d, v3
    v_lshrrev_b32 v53, 2, v4
    v_lshlrev_b32 v53, %d, v53
    s_lshl_b32 s40, s18, 1
    s_add_u32 s40, s40, s21               ; rb*2 + rw
    s_lshl_b32 s41, s40, 6
    s_add_u32 s41, s41, s23
    s_lshl_b32 s41, s41, 11
    s_add_u32 s41, s41, %d
    s_add_u32 s42, s41, 65536
    s_lshl_b32 s12, s18, 10
    s_lshl_b32 s40, s21, 5
    s_add_u32 s40, s40, s12
    s_add_u32 s40, s40, s23
    s_lshl_b32 s40, s40, %d
    s_add_u32 s40, s40, %d
    s_sub_u32 s21, s72, 1
    s_mov_b32 s22, s73
    s_mov_b32 s23, s74''' % (OFF_KVF, 3 + ZFL, OFF_ZF, ZFL, ZFL, OFF_O, OSL, OFF_OFL))
    if NR:
        A('''s_lshl_b32 s40, s18, 1
        s_lshr_b32 s12, s20, 1
        s_add_u32 s40, s40, s12
        s_lshl_b32 s40, s40, 5
        s_lshl_b32 s12, s19, 1
        s_add_u32 s40, s40, s12
        s_and_b32 s12, s20, 1
        s_add_u32 s40, s40, s12
        s_lshl_b32 s40, s40, 7
        s_add_u32 s40, s40, %d''' % OFF_OF2)
    phaseb_ids(A, opt)
    pb_prep(A, opt)
    A('s_mov_b32 s13, 0')
    EB = opt.get('eb', 0)
    if EB:
        A('v_mov_b32 v54, %d' % P_WO)
    def gbflag(k):
        if EB == k:
            A('s_mov_b64 exec, 1'); A('ds_write_b32 v13, v15 offset:%d' % (P_GB - P_XF)); A('s_mov_b64 exec, -1')
    TH2 = opt.get('th2', -1)
    if TH2 < 0:
        A('v_mov_b32 v54, %d' % P_H1)
        A('L_c_kz:')
        A('ds_read_b32 v55, v54')
        if EB:
            A('ds_read_b128 v[112:115], v54 offset:%d' % (P_WO - P_H1))
            A('ds_read_b128 v[116:119], v54 offset:%d' % (P_KS - P_H1))
        A('s_add_u32 s13, s13, 1')
        A('s_cmp_ge_u32 s13, %d' % SPIN_L)
        A('s_cbranch_scc1 L_c_kzok')
        A('s_waitcnt lgkmcnt(0)')
        if EB:
            for r in range(112, 120): A('v_and_b32 v55, v55, v%d' % r)
        A('v_cmp_eq_u32 vcc, 1, v55')
        A('s_cbranch_vccz L_c_kz')
        A('L_c_kzok:')
        A('s_mov_b32 s13, 0')
    elif TH2 < 8:
        A('L_c_kz:')
        A('buffer_load_dword v55, v53, s[32:35], s46 offen sc1')
        A('s_add_u32 s13, s13, 1')
        A('s_cmp_ge_u32 s13, %d' % SPIN_G)
        A('s_cbranch_scc1 L_c_kzok')
        A('s_waitcnt vmcnt(0)')
        A('v_cmp_eq_u32 vcc, -1, v55')
        A('s_bcnt1_i32_b32 s12, vcc_lo')
        A('s_cmp_gt_u32 s12, %d' % (4 * TH2))
        A('s_cbranch_scc1 L_c_kz')
        A('L_c_kzok:')
        S.val(21, 13)
    FK = 112; FZ = 128; NUM = [160, 176]; DEN = [192, 208]
    def kvl(sc):
        for mm in range(4):
            A('buffer_load_dwordx4 %s, v5, s[32:35], s43 offen offset:%d%s' % (vr(FK + mm * 4, 4), mm * 1024, sc))
        for mm in range(4):
            A('buffer_load_dwordx4 %s, v52, s[32:35], s46 offen offset:%d%s' % (vr(FZ + mm * 4, 4), mm * (2 << ZFL), sc))
    if opt.get('kvp', 0):
        kvl(['', '', ' sc0'][opt['kvp']])
        A('s_branch L_c_kvw')
    A('L_c_kv:')
    kvl(' sc1')
    if opt.get('kvp', 0): A('L_c_kvw:')
    A('s_add_u32 s13, s13, 1')
    A('s_waitcnt vmcnt(0)')
    poison_chain(A, range(FK, FK + 32), 55)
    A('v_cmp_eq_u32 vcc, -1, v55')
    A('s_cbranch_vccz L_c_kvok')
    A('s_cmp_lt_u32 s13, %d' % SPIN_G)
    A('s_cbranch_scc1 L_c_kv')
    A('L_c_kvok:')
    gbflag(1)
    S.val(20, 13)
    S(6)
    OP = [64, 72]
    def omf(u):
        Bop = [QP[u], QP[u] + 4, QM[u], QM[u] + 4]; L = []
        for mm in range(4):
            L.append(mf(DEN[u], FZ + mm * 4, Bop[mm], mm == 0))
            L.append(mf(NUM[u], FK + mm * 4, Bop[mm], mm == 0))
        if opt.get('oo', 1): L = L[0::2] + L[1::2]
        return L
    def oval(u, pk):
        R = Rec()
        d = [54, 62][u]
        R('v_cvt_pk_bf16_f32 v%d, 0, v%d' % (d, DEN[u]))
        R('v_add_f32 v%d, 0x358637bd, v%d' % (d, d))
        R('v_cvt_pk_bf16_f32 v%d, 0, v%d' % (d, d))
        R('v_rcp_f32 v%d, v%d' % (d, d))
        n0 = len(R.l)
        if pk:
            R('\n'.join(cvtl(OP[u], NUM[u]))); unpack(R, NUM[u], OP[u])
            for i in range(8):
                R('v_pk_mul_f32 %s, %s, %s op_sel_hi:[1,0]' % (vr(NUM[u] + 2 * i, 2), vr(NUM[u] + 2 * i, 2), vr(d, 2)))
        else:
            for i in range(16): R('v_cvt_pk_bf16_f32 v%d, 0, v%d' % (NUM[u] + i, NUM[u] + i))
            for i in range(16): R('v_mul_f32 v%d, v%d, v%d' % (NUM[u] + i, NUM[u] + i, d))
        return R.l[:n0], R.l[n0:]
    def ost(u):
        c = cvtl(OP[u], NUM[u])
        return c[:4] + ['buffer_store_dwordx4 %s, v5, s[32:35], s%d offen sc1' % (vr(OP[u], 4), 41 + u)] + c[4:] + \
               ['buffer_store_dwordx4 %s, v5, s[32:35], s%d offen offset:1024 sc1' % (vr(OP[u] + 4, 4), 41 + u)]
    if opt.get('oo', 1):
        m0_ = omf(0); m1_ = omf(1)
        d0, n0 = oval(0, False); d1, n1 = oval(1, False)
        assert NR and OM and not opt.get('ps', 0)
        R = Rec(); own_first(R, 'c')
        fp = ['v_mov_b32 v%d, s23' % r for r in range(56, 60)] + ['v_lshrrev_b32 v60, 3, v2', 'v_lshlrev_b32 v60, 17, v60', 'v_and_b32 v61, 0x70, v5', 'v_add_u32 v60, v60, v61']
        for x in m0_[:5] + R.l + [m0_[5]] + fp[:4] + [m0_[6]] + fp[4:] + [m0_[7]] + d0: A(x)
        v0 = n0 + ost(0)
        mix(m1_, v0, opt.get('og1', 5))
        for x in d1: A(x)
        rr = n1[:16]; mu = ['v_pk_mul_f32 %s, %s, %s op_sel_hi:[1,0]' % (vr(NUM[1] + 2 * i, 2), vr(NUM[1] + 2 * i, 2), vr(62, 2)) for i in range(8)]
        st = ost(1)
        for x in rr[:8] + mu[:4] + st[:5] + rr[8:] + mu[4:] + st[5:]: A(x)
    else:
        for u in range(2):
            for x in omf(u): A(x)
        for u in range(2):
            d_, n_ = oval(u, True)
            for x in d_ + n_: A(x)
            c = ost(u)
            for x in c[:4] + c[5:9] + [c[4], c[9]]: A(x)
    gbflag(2)
    S(7)
    if opt.get('oo', 1): pass
    elif NR:
        for r in range(56, 60): A('v_mov_b32 v%d, s23' % r)
        A('v_lshrrev_b32 v60, 3, v2')
        A('v_lshlrev_b32 v60, 17, v60')
        A('v_and_b32 v61, 0x70, v5')
        A('v_add_u32 v60, v60, v61')
    else:
        A('v_mov_b32 v16, s23')
        A('v_lshlrev_b32 v60, 8, v2')
    PS = opt.get('ps', 0)
    if PS == 3:
        A('v_lshlrev_b32 v9, 7, v4')
    if not opt.get('oo', 1): own_first(A, 'c')
    if PS == 3: A('buffer_load_dword v%d, v9, s[32:35], s15 offen sc1' % FL0)
    elif PS: A('buffer_load_dword v%d, v8, s[32:35], s15 offen sc1' % FL0)
    A('s_waitcnt vmcnt(%d)' % (1 if PS >= 2 else 0))
    if NR:
        if NR < 8:
            A('s_mov_b32 exec_lo, 0x%x' % ((1 << (8 * NR)) - 1)); A('s_mov_b32 exec_hi, 0')
        A('buffer_store_dwordx4 v[56:59], v60, s[32:35], s40 offen sc1')
    else:
        A('s_mov_b64 exec, %s' % ('0xffff' if opt.get('rf', 1) else '1'))
        A('buffer_store_dword v16, v60, s[32:35], s40 offen sc1')
    A('s_mov_b64 exec, -1')
    gbflag(3)
    S(8)
    if PS == 3:
        A('s_lshl_b32 s12, s20, 2'); A('s_add_u32 s12, s12, %d' % P_WO)
        A('v_mov_b32 v9, s12')
        A('s_waitcnt vmcnt(1)')
        A('v_cmp_eq_u32 vcc, s23, v%d' % FL0)
        A('v_mov_b32 v16, vcc_lo')
        A('s_mov_b64 exec, 1'); A('ds_write_b32 v9, v16'); A('s_mov_b64 exec, -1')
        A('s_waitcnt lgkmcnt(0)')

def t2calc(A):
    unpack(A, 32, 24)
    for i in range(8):
        A('v_pk_mul_f32 %s, %s, v[50:51] op_sel_hi:[1,0]' % (vr(32 + 2 * i, 2), vr(32 + 2 * i, 2)))
    for i in range(8): A('v_cvt_pk_bf16_f32 v%d, v%d, v%d' % (32 + 2 * i + 1, 32 + 2 * i, 33 + 2 * i))
    if ET:
        for i in (0, 1, 4, 5): A('v_permlane32_swap_b32 v%d, v%d' % (33 + 2 * i, 37 + 2 * i))
    for i in range(8):
        A('v_lshlrev_b32 v%d, 16, v%d' % (32 + 2 * i, 33 + 2 * i))
        A('v_and_b32 v%d, 0xffff0000, v%d' % (33 + 2 * i, 33 + 2 * i))

def pb_prep(A, opt, part=3):
    if part & 1: pb_prep_a(A, opt)
    if part & 2: pb_prep_b(A, opt)

def pb_prep_a(A, opt):
    srd(A, 68, 58, 4 << 20)
    PR = opt.get('pr', 0)
    if PR: A('s_lshr_b32 s90, s20, 1'); A('s_and_b32 s91, s20, 1')
    else: A('s_and_b32 s90, s20, 3'); A('s_lshr_b32 s91, s20, 2')
    A('''s_lshl_b32 s12, s88, 3
    s_lshl_b32 s13, s90, 1
    s_add_u32 s12, s12, s13
    s_add_u32 s92, s12, s91              ; row block of 16
    s_lshl_b32 s12, s92, 4
    v_and_b32 v3, 15, v2
    v_add_u32 v6, s12, v3
    v_lshlrev_b32 v8, 2, v6
    v_bfe_u32 v9, v2, 4, 1
    v_lshrrev_b32 v10, 5, v2
    v_lshlrev_b32 v7, 11, v6
    v_lshl_add_u32 v7, v9, 6, v7
    v_lshl_add_u32 v7, v10, 4, v7
    s_lshl_b32 s12, s89, 7
    v_add_u32 v7, s12, v7
    s_mov_b32 s12, %d
    buffer_load_dwordx4 v[24:27], v7, s[24:27], 0 offen
    buffer_load_dwordx4 v[28:31], v7, s[24:27], 0 offen offset:32
    buffer_load_dword v48, v8, s[32:35], s12 offen sc1''' % OFF_G)
    A('''v_lshlrev_b32 v22, 8, v3
    v_lshl_add_u32 v22, v9, 7, v22
    v_lshl_add_u32 v22, v10, 5, v22      ; y lane offset
    v_lshlrev_b32 v10, 9, v10
    v_bfe_u32 v11, v2, 2, 2
    v_lshl_add_u32 v10, v11, 7, v10
    v_bfe_u32 v11, v2, 3, 1
    v_lshl_add_u32 v10, v11, 6, v10
    v_lshl_add_u32 v10, v9, 5, v10
    v_and_b32 v11, 3, v2
    v_lshl_add_u32 v10, v11, 3, v10
    v_xor_b32 v11, 64, v10
    s_lshl_b32 s12, s91, 8
    v_xor_b32 v17, s12, v5
    v_lshlrev_b32 v8, %d, v3
    s_lshl_b32 s12, s20, 12
    s_mov_b32 s15, %d
    s_cmp_lt_u32 s20, 6
    s_cselect_b32 s13, s15, %d
    s_add_u32 s12, s12, s13
    v_add_u32 v20, s12, v5
    s_xor_b32 s14, s20, %d
    s_lshl_b32 s12, s14, 12
    s_cmp_lt_u32 s14, 6
    s_cselect_b32 s13, s15, %d
    s_add_u32 s12, s12, s13
    v_add_u32 v21, s12, v5
    s_lshl_b32 s12, s88, 2
    s_add_u32 s12, s12, s90              ; R
    s_lshl_b32 s13, s12, 16
    s_lshl_b32 s14, s91, 15
    s_add_u32 s13, s13, s14
    s_add_u32 s95, s13, %d               ; o base
    s_lshl_b32 s12, s88, 12
    s_lshl_b32 s13, s89, 8
    s_mul_i32 s13, s13, %d
    s_add_u32 s12, s12, s13
    s_lshr_b32 s13, s90, 1
    s_lshl_b32 s13, s13, 7
    s_add_u32 s12, s12, s13
    s_lshl_b32 s13, s91, 6
    s_add_u32 s12, s12, s13
    s_add_u32 s15, s12, %d               ; flag offset
    s_lshl_b32 s97, s91, 4''' % (OSL, SCR, P - 6 * 4096, 1 if PR else 4, P - 6 * 4096, OFF_O, opt.get('rf', 1), OFF_OFL))
    if NR:
        A('''v_lshlrev_b32 v8, 7, v3
        s_lshl_b32 s12, s88, 1
        s_lshr_b32 s13, s90, 1
        s_add_u32 s12, s12, s13
        s_lshl_b32 s12, s12, 12
        s_lshl_b32 s13, s91, 11
        s_add_u32 s12, s12, s13
        s_and_b32 s13, s89, %d
        s_lshl_b32 s13, s13, 17
        s_add_u32 s12, s12, s13
        s_add_u32 s15, s12, %d''' % (NR - 1, OFF_OF2))
    if opt.get('bm', 1) == 0:
        A('s_and_b32 s93, s89, 7'); A('s_lshl_b32 s93, s93, 1')
    else:
        A('s_mov_b32 s93, s89')
    if opt.get('norot'): A('s_mov_b32 s93, 0')

def pb_prep_b(A, opt, wait=True):
    if wait: A('s_waitcnt vmcnt(0)')
    A('v_sub_f32 v50, 1.0, v48')
    A('v_cvt_pk_bf16_f32 v50, v50, v50')
    A('v_lshlrev_b32 v50, 16, v50')
    t2calc(A)

Y = 224; Y2 = 240
def own_ld(A):
    A('s_lshl_b32 s12, s89, 12')
    A('s_add_u32 s12, s12, %d' % OFF_YP)
    for k in range(4):
        A('buffer_load_dwordx4 %s, v22, s[32:35], s12 offen offset:%d sc1' % (vr(Y + 4 * k, 4), (k >> 1) * 64 + (k & 1) * 16))

def own_first(A, tg):
    A('s_mov_b32 s45, 0')
    A('s_lshr_b32 s12, s21, 4')
    A('s_cmp_eq_u32 s12, s92')
    A('s_cselect_b32 s46, 1, 0')
    if OM:
        A('s_mov_b32 s45, 1')
        return
    A('s_cbranch_scc0 L_b_noown' + tg)
    own_ld(A)
    A('L_b_noown%s:' % tg)

def own_block(A):
    A('L_own:')
    A('s_mov_b32 s13, 0')
    A('L_b_y:')
    A('s_waitcnt vmcnt(0)')
    A('v_msad_u8 v%d, v%d, s76, 0' % (Y2, Y))
    for k in range(1, 16): A('v_msad_u8 v%d, v%d, s%d, v%d' % (Y2, Y + k, 76 + (k & 3), Y2))
    A('v_cmp_ne_u32 vcc, 0, v%d' % Y2)
    A('s_or_b32 s46, vcc_lo, vcc_hi')
    A('s_cbranch_scc0 L_b_yok')
    A('s_cmp_eq_u32 s45, 0')
    A('s_cbranch_scc1 L_b_yok')
    own_ld(A)
    A('s_add_u32 s13, s13, 1')
    A('s_cmp_lt_u32 s13, %d' % SPIN_G)
    A('s_cbranch_scc1 L_b_y')
    A('s_waitcnt vmcnt(0)')
    A('s_mov_b32 s46, 0')
    A('L_b_yok:')
    for mod in ('row_ror:1', 'row_ror:2', 'row_ror:4', 'row_ror:8'):
        for r in range(Y, Y + 16):
            A('v_add_f32_dpp v%d, v%d, v%d %s row_mask:0xf bank_mask:0xf' % (r, r, r, mod))
    for i in range(8): A('v_cvt_pk_bf16_f32 v%d, v%d, v%d' % (Y2 + i, Y + 2 * i, Y + 1 + 2 * i))
    unpack(A, Y, Y2)
    for r in range(8): A('v_pk_mul_f32 %s, %s, s[22:23] op_sel_hi:[1,0]' % (vr(Y + 2 * r, 2), vr(Y + 2 * r, 2)))
    for i in range(8): A('v_cvt_pk_bf16_f32 v%d, v%d, v%d' % (Y2 + i, Y + 2 * i, Y + 1 + 2 * i))
    unpack(A, Y, Y2)
    unpack(A, 32, 24)
    for r in range(8): A('v_pk_add_f32 %s, %s, %s' % (vr(Y + 2 * r, 2), vr(Y + 2 * r, 2), vr(32 + 2 * r, 2)))
    for i in range(8): A('v_cvt_pk_bf16_f32 v%d, v%d, v%d' % (Y2 + i, Y + 2 * i, Y + 1 + 2 * i))
    A('s_cmp_eq_u32 s46, 0')
    A('s_cselect_b32 s12, s21, -1')
    A('v_cmp_eq_u32 vcc, s12, v6')
    for i in range(8): A('v_cndmask_b32 v%d, v%d, v%d, vcc' % (24 + i, 24 + i, Y2 + i))
    t2calc(A)
    if OM:
        A('s_branch L_own_r1')
        return
    A('s_cmp_eq_u32 s45, 0')
    A('s_cbranch_scc0 L_own_r1')
    if EBO:
        A('s_cmp_ge_u32 s20, 4')
        A('s_cbranch_scc1 L_own_r2')
    A('s_branch L_own_r0')

def phaseb(A, opt, S):
    D = opt.get('od', 3)
    for _ in range(opt.get('pp', 0)): A.raw('s_nop 0')
    A('L_phaseb:')
    A('s_setprio %d' % opt.get('bp', 0))
    A('s_nop 4')
    A.raw(';@REG b')
    if not OM:
        A('s_cmp_lg_u32 s46, 0')
        A('s_cbranch_scc1 L_own')
    A('L_own_r0:')
    A('s_nop 0')
    S(13)
    if opt.get('nb', 0):
        A('v_mov_b32 v9, %d' % P_WO)
        A('s_mov_b32 s13, 0')
        A('L_wspin:')
        A('ds_read_b128 v[64:67], v9')
        A('s_add_u32 s13, s13, 1')
        A('s_cmp_ge_u32 s13, %d' % SPIN_L)
        A('s_cbranch_scc1 L_wok')
        A('s_waitcnt lgkmcnt(0)')
        A('v_and_b32 v64, v64, v65')
        A('v_and_b32 v66, v66, v67')
        A('v_and_b32 v64, v64, v66')
        A('v_cmp_eq_u32 vcc, 1, v64')
        A('s_cbranch_vccz L_wspin')
        A('L_wok:')
        A('s_waitcnt lgkmcnt(0)')
    elif not opt.get('eb', 0):
        A('s_barrier')
    S(14)
    ACC = [64, 80]; OB = 96; WF = [96 + 8 * D, 112 + 8 * D]
    HQ = 80
    def laddr(i):
        a = 12 + 2 * (i & 1)
        A('s_add_u32 s12, s%d, s97' % (HQ + i % 8))
        A('s_lshl_b32 s13, s12, 12')
        A('s_cmp_ge_u32 s12, %d' % HGAP)
        A('s_cselect_b32 s12, 24576, 0')
        A('s_add_u32 s13, s13, s12')
        A('v_add_u32 v%d, s13, v10' % a)
        A('v_add_u32 v%d, s13, v11' % (a + 1))
    def tr(i, k):
        mm, nt = k >> 1, k & 1
        a = 12 + 2 * (i & 1) + nt
        for jj in range(2):
            A('ds_read_b64_tr_b16 %s, v%d offset:%d' % (vr(WF[i & 1] + k * 4 + 2 * jj, 2), a, mm * 2048 + jj * 1024))
    Q = []
    def waitq(tag):
        last = max(k for k, t in enumerate(Q) if t == tag)
        A('s_waitcnt vmcnt(%d)' % (len(Q) - 1 - last))
        del Q[:last + 1]
    NF = opt.get('nf', 0); PD = opt.get('pd', 0); PM = opt.get('pm', 0)
    if PD:
        for r in range(250, 254): A('v_mov_b32 v%d, 0' % r)
    def snap(r, force):
        A('v_cmp_eq_u32 vcc, s23, v%d' % r)
        if force and PM: A('s_mov_b64 exec, -1')
        if force: A('s_or_b32 s12, s12, vcc_lo')
        A('s_lshr_b32 s12, %s, s93' % ('s12' if force else 'vcc_lo'))
        A('s_or_b32 s96, s96, s12')
        A('s_andn2_b32 s96, s96, s14')
    def pick(i, use):
        if use is not None:
            snap(FL0 + use % 8, False)
        else:
            A('s_cmp_lg_u32 s96, 0')
        A('s_cbranch_scc1 L_pk%d' % i)
        if NF and i > 0:
            A('s_waitcnt vmcnt(0)')
            snap(FL0 + i % 8, False)
            A('s_cbranch_scc1 L_pk%d' % i)
        A('L_pl%d:' % i)
        if PM:
            A('s_not_b32 s12, s14'); A('s_lshl_b32 exec_lo, s12, s93'); A('s_mov_b32 exec_hi, 0')
        A('buffer_load_dword v%d, v8, s[32:35], s15 offen sc1' % (FL0 + i % 8))
        A('s_add_u32 s47, s47, 1')
        A('s_cmp_ge_u32 s47, %d' % SPIN_G)
        A('s_cselect_b32 s12, -1, 0')
        A('s_waitcnt vmcnt(0)')
        snap(FL0 + i % 8, True)
        if PD:
            A('s_memrealtime s[100:101]'); A('s_or_b32 s98, s96, s14'); A('s_and_b32 s98, s98, 0xffff'); A('s_bcnt1_i32_b32 s98, s98')
            A('s_min_u32 s99, s47, 63'); A('s_mov_b32 m0, s99'); A('s_waitcnt lgkmcnt(0)')
            A('v_writelane_b32 v252, s100, m0'); A('v_writelane_b32 v253, s98, m0')
            A('s_cmp_lg_u32 s96, 0')
        if opt.get('dyn', 1) == 0: A('s_cmp_eq_u32 s96, 0xffff')
        A('s_cbranch_scc0 L_pl%d' % i)
        A('L_pk%d:' % i)
        h = HQ + i % 8
        A('s_ff1_i32_b32 s12, s96')
        A('s_bitset0_b32 s96, s12')
        A('s_bitset1_b32 s14, s12')
        A('s_add_u32 s12, s12, s93')
        A('s_and_b32 s%d, s12, 15' % h)
    def oload(i, use):
        b = OB + 8 * (i % D)
        pick(i, use)
        A('s_lshl_b32 s94, s%d, 11' % (HQ + i % 8))
        A('s_add_u32 s94, s94, s95')
        sc = ' sc1' if opt.get('osc', 0) else ''
        if PD:
            A('s_memrealtime s[100:101]'); A('s_waitcnt lgkmcnt(0)'); A('v_writelane_b32 v251, s100, %d' % i)
        if opt.get('xo') and i >= D: A('s_mov_b64 exec, 1')
        A('buffer_load_dwordx4 %s, v17, s[32:35], s94 offen%s' % (vr(b, 4), sc)); Q.append('o%d' % i)
        A('buffer_load_dwordx4 %s, v17, s[32:35], s94 offen offset:1024%s' % (vr(b + 4, 4), sc)); Q.append('o%d' % i)
        if opt.get('xo') and i >= D: A('s_mov_b64 exec, -1')
        if NF and i < 15:
            A('buffer_load_dword v%d, v8, s[32:35], s15 offen sc1' % (FL0 + (i + 1) % 8)); Q.append('f%d' % (i + 1))
        if i == 0:
            S(15)
            laddr(0)
            for k in range(4): tr(0, k)
    A('s_mov_b32 s14, 0xffff0000')
    A('s_mov_b32 s47, 0')
    A('s_mov_b32 s96, 0')
    PS = opt.get('ps', 0)
    if PS == 3:
        A('s_lshl_b32 s12, s90, 2'); A('s_add_u32 s12, s12, %d' % P_WO)
        A('v_mov_b32 v9, s12')
        A('ds_read_b32 v9, v9')
        A('s_lshl_b32 s13, s91, 4')
        A('s_waitcnt lgkmcnt(0)')
        A('v_readfirstlane_b32 s12, v9')
        A('s_lshr_b32 s12, s12, s13')
        A('s_and_b32 s12, s12, 0xffff')
        A('s_mul_i32 s12, s12, 0x10001')
        A('s_lshr_b32 s12, s12, s93')
        A('s_and_b32 s96, s12, 0xffff')
    elif PS == 2: A('s_waitcnt vmcnt(1)')
    elif PS == 1 or opt.get('nw', 1) == 0: A('s_waitcnt vmcnt(0)')
    PR = opt.get('pr', 0)
    if PR >= 2:
        A('buffer_load_dword v%d, v8, s[32:35], s15 offen sc1' % FL0)
        A('v_mov_b32 v9, -1')
        A('ds_write_b32 v20, v9')
        A('s_waitcnt lgkmcnt(0)')
        A('s_barrier')
        A('s_waitcnt vmcnt(0)')
    for i in range(D): oload(i, 0 if (i == 0 and (PS in (1, 2) or PR >= 2)) else None)
    for i in range(16):
        if PR and i == opt.get('pi', 12):
            A('s_cmp_lt_u32 s20, 4')
            A('s_cbranch_scc%d L_b_np' % (1 if opt.get('pb4', 0) else 0))
            A('s_setprio 2')
            A('L_b_np:')
        if i < 15: laddr(i + 1)
        b = OB + 8 * (i % D)
        waitq('o%d' % i)
        if PD:
            A('s_memrealtime s[100:101]'); A('s_waitcnt lgkmcnt(0)'); A('v_writelane_b32 v250, s100, %d' % i)
        for k in range(4):
            mm, nt = k >> 1, k & 1
            A('s_waitcnt lgkmcnt(%d)' % (6 if i < 15 else 6 - 2 * k))
            A('v_mfma_f32_32x32x16_bf16 %s, %s, %s, %s' % (vr(ACC[nt], 16), vr(WF[i & 1] + k * 4, 4), vr(b + mm * 4, 4), '0' if (i == 0 and mm == 0) else vr(ACC[nt], 16)))
            if i < 15: tr(i + 1, k)
        if i + D < 16: oload(i + D, i if (NF and i > 0) else None)
        if OM and i == OM + opt.get('og', 2):
            A('s_cmp_lg_u32 s46, 0')
            A('s_cbranch_scc1 L_own')
            A('L_own_r1:')
        if (i == OM if OM else i + D == 15):
            A('s_mov_b32 s45, 1')
            A('s_cmp_eq_u32 s46, 0')
            A('s_cbranch_scc1 L_b_nold')
            own_ld(A)
            A('L_b_nold:')
        if i == 0: S(16)
    S(17)
    S.val(24, 47)
    if not OM:
        A('s_cmp_lg_u32 s46, 0')
        A('s_cbranch_scc1 L_own')
        A('L_own_r1:')
        A('s_nop 0')
    else: pass
    if ET:
        assert not opt.get('nb', 0) and not opt.get('eb', 0) and opt.get('fls', 1)
        PK = 96; F = 104
        SP = ['', ' nt', ' sc1', ' sc0 sc1', ' nt sc1'][opt.get('sto', 2)]
        A('v_bfe_u32 v9, v2, 3, 1')
        A('v_mul_u32_u24 v9, %d, v9' % (8 * 2048 - 32))
        A('v_sub_u32 v7, v7, v9')
        A('s_mov_b32 s12, 16384')
        for q in ((1, 2, 3, 0) if PR >= 2 else range(4)):
            for r in range(4 * q, 4 * q + 4): A('v_permlane16_swap_b32 v%d, v%d' % (ACC[0] + r, ACC[1] + r))
            A('ds_write_b128 v20, %s offset:%d' % (vr(ACC[1] + q * 4, 4), q * 1024))
        if PR < 2:
            A('s_waitcnt lgkmcnt(0)')
            A('s_barrier')
        else:
            A('s_mov_b32 s13, 0')
            if PR == 2: A('s_waitcnt lgkmcnt(0)')
            A('L_ex:')
        for q in range(4):
            A('ds_read_b128 %s, v21 offset:%d' % (vr(ACC[1] + q * 4, 4), q * 1024))
        G = opt.get('eg', 1)
        for q0 in range(0, 4, G):
            A('s_waitcnt lgkmcnt(%d)' % (4 - q0 - G))
            if PR >= 2 and q0 == 0 and opt.get('pe', 0): A('s_setprio %d' % (opt.get('pe', 0) - 1))
            if PR >= 2 and q0 == 0:
                A('v_cmp_eq_u32 vcc, -1, v%d' % ACC[1])
                A('s_cbranch_vccnz L_exw')
                A('L_exok:')
            rs = range(4 * q0, 4 * (q0 + G))
            for r in rs[::2]: A('v_pk_add_f32 %s, %s, %s' % (vr(ACC[0] + r, 2), vr(ACC[0] + r, 2), vr(ACC[1] + r, 2)))
            for r in rs: A('v_cvt_pk_bf16_f32 v%d, 0, v%d' % (ACC[0] + r, ACC[0] + r))
            for r in rs[::2]: A('v_pk_mul_f32 %s, %s, v[48:49] op_sel_hi:[1,0]' % (vr(ACC[0] + r, 2), vr(ACC[0] + r, 2)))
            for r in rs: A('v_cvt_pk_bf16_f32 v%d, 0, v%d' % (ACC[0] + r, ACC[0] + r))
            for r in rs[::2]: A('v_pk_add_f32 %s, %s, %s' % (vr(ACC[0] + r, 2), vr(ACC[0] + r, 2), vr(32 + r, 2)))
            for r in rs[::2]: A('v_cvt_pk_bf16_f32 v%d, v%d, v%d' % (PK + r // 2, ACC[0] + r, ACC[0] + r + 1))
        for c in range(2):
            A('v_permlane32_swap_b32 v%d, v%d' % (PK + 4 * c, PK + 4 * c + 2))
            A('v_permlane32_swap_b32 v%d, v%d' % (PK + 4 * c + 1, PK + 4 * c + 3))
        for i in range(4): A('v_mov_b32 v%d, v%d' % (F + i, PK + i))
        for i in range(4): A('v_mov_b32_dpp v%d, v%d row_ror:8 row_mask:0xf bank_mask:0xc' % (PK + i, PK + 4 + i))
        A('buffer_store_dwordx4 %s, v7, s[68:71], 0 offen%s' % (vr(PK, 4), SP))
        for i in range(4): A('v_mov_b32_dpp v%d, v%d row_ror:8 row_mask:0xf bank_mask:0x3' % (PK + 4 + i, F + i))
        A('buffer_store_dwordx4 %s, v7, s[68:71], s12 offen%s' % (vr(PK + 4, 4), SP))
        S(18)
        A.raw(';@END')
        S.dump()
        A('s_endpgm')
        if PR >= 2:
            A('L_exw:')
            A('s_cmp_ge_u32 s13, %d' % SPIN_L)
            A('s_cbranch_scc1 L_exok')
            A('L_exw2:')
            A('ds_read_b32 v9, v21')
            A('s_add_u32 s13, s13, 1')
            A('s_cmp_ge_u32 s13, %d' % SPIN_L)
            A('s_waitcnt lgkmcnt(0)')
            A('s_cbranch_scc1 L_ex')
            A('v_cmp_eq_u32 vcc, -1, v9')
            A('s_cbranch_vccnz L_exw2')
            A('s_branch L_ex')
        own_block(A)
        return
    for r in range(16): A('v_permlane16_swap_b32 v%d, v%d' % (ACC[0] + r, ACC[1] + r))
    if opt.get('nb', 0): A('s_barrier')
    if opt.get('eb', 0):
        A('s_cmp_lg_u32 s20, 7')
        A('s_cbranch_scc1 L_pok')
        A('v_mov_b32 v9, %d' % P_PASS)
        A('s_mov_b32 s13, 0')
        A('L_pspin:')
        A('ds_read_b32 v12, v9')
        A('s_add_u32 s13, s13, 1')
        A('s_cmp_ge_u32 s13, %d' % SPIN_L)
        A('s_waitcnt lgkmcnt(0)')
        A('s_cbranch_scc1 L_pok')
        A('v_cmp_eq_u32 vcc, 4, v12')
        A('s_cbranch_vccz L_pspin')
        A('L_pok:')
    for q in range(4):
        A('ds_write_b128 v20, %s offset:%d' % (vr(ACC[1] + q * 4, 4), q * 1024))
    A('s_waitcnt lgkmcnt(0)')
    FLS = opt.get('fls', 1)
    if FLS:
        A('v_bfe_u32 v9, v2, 3, 1')
        A('v_mul_u32_u24 v9, %d, v9' % (8 * 2048 - 32))
        A('v_sub_u32 v7, v7, v9')
        A('s_mov_b32 s12, 16384')
    A('s_barrier')
    for q in range(4):
        A('ds_read_b128 %s, v21 offset:%d' % (vr(ACC[1] + q * 4, 4), q * 1024))
    PK = 96; F = 104
    for q in range(4):
        A('s_waitcnt lgkmcnt(%d)' % (3 - q))
        for z in range(2):
            r = q * 4 + 2 * z
            A('v_pk_add_f32 %s, %s, %s' % (vr(ACC[0] + r, 2), vr(ACC[0] + r, 2), vr(ACC[1] + r, 2)))
        for z in range(2):
            r = q * 4 + 2 * z
            A('v_cvt_pk_bf16_f32 v%d, v%d, v%d' % (PK + r // 2, ACC[0] + r, ACC[0] + r + 1))
    for c in range(2):
        A('v_permlane32_swap_b32 v%d, v%d' % (PK + 4 * c, PK + 4 * c + 2))
        A('v_permlane32_swap_b32 v%d, v%d' % (PK + 4 * c + 1, PK + 4 * c + 3))
    SP = ['', ' nt', ' sc1', ' sc0 sc1', ' nt sc1'][opt.get('sto', 2)]
    for c in range(2):
        f = F + 8 * c; pk = PK + 4 * c
        unpack(A, f, pk, 4)
        for i in range(4):
            A('v_pk_mul_f32 %s, %s, v[48:49] op_sel_hi:[1,0]' % (vr(f + 2 * i, 2), vr(f + 2 * i, 2)))
        for i in range(4): A('v_cvt_pk_bf16_f32 v%d, v%d, v%d' % (pk + i, f + 2 * i, f + 2 * i + 1))
        unpack(A, f, pk, 4)
        for i in range(4):
            A('v_pk_add_f32 %s, %s, %s' % (vr(f + 2 * i, 2), vr(f + 2 * i, 2), vr(32 + 8 * c + 2 * i, 2)))
        for i in range(4): A('v_cvt_pk_bf16_f32 v%d, v%d, v%d' % (pk + i, f + 2 * i, f + 2 * i + 1))
        if not FLS: A('buffer_store_dwordx4 %s, v7, s[68:71], 0 offen offset:%d%s' % (vr(pk, 4), 32 * c, SP))
    if FLS:
        for i in range(4): A('v_mov_b32 v%d, v%d' % (F + i, PK + 4 + i))
        for i in range(4): A('v_mov_b32_dpp v%d, v%d row_ror:8 row_mask:0xf bank_mask:0x3' % (PK + 4 + i, PK + i))
        for i in range(4): A('v_mov_b32_dpp v%d, v%d row_ror:8 row_mask:0xf bank_mask:0xc' % (PK + i, F + i))
        A('buffer_store_dwordx4 %s, v7, s[68:71], 0 offen%s' % (vr(PK, 4), SP))
        A('buffer_store_dwordx4 %s, v7, s[68:71], s12 offen%s' % (vr(PK + 4, 4), SP))
    S(18)
    if PD:
        A('s_lshl_b32 s98, s20, 8'); A('s_add_u32 s98, s98, s2'); A('s_lshl_b32 s98, s98, 10')
        A('s_add_u32 s98, s98, %d' % (OFF_ST + (1 << 20)))
        A('v_lshlrev_b32 v249, 2, v2')
        for k in range(4): A('buffer_store_dword v%d, v249, s[32:35], s98 offen offset:%d' % (250 + k, 256 * k))
    A.raw(';@END')
    S.dump()
    A('s_endpgm')
    own_block(A)

def build(opt):
    hdr = open('/code/%s.s.ref' % NAME).read().split('; Override launch')[0]
    out = hdr
    out += '; @launch grid=(256,1,1) block=(512,1,1) lds=%d\n' % LDS_TOTAL
    out += '.amdgcn_target "amdgcn-amd-amdhsa--gfx950"\n.text\n'
    a = Asm()
    gen(a, opt)
    nm = NAME + '_kernel'
    out += '.globl %s\n%s.p2align 8\n.type %s,@function\n' % (nm, '.p2align 12\n' if opt.get('pg', 0) else '', nm)
    out += a.text()
    out += '.section .rodata,"a"\n.p2align 6\n'
    out += '''.amdhsa_kernel %s
  .amdhsa_next_free_vgpr 256
  .amdhsa_next_free_sgpr 102
  .amdhsa_accum_offset 256
  .amdhsa_group_segment_fixed_size 0
  .amdhsa_kernarg_size 104
  .amdhsa_user_sgpr_count 2
  .amdhsa_user_sgpr_kernarg_segment_ptr 1
  .amdhsa_system_sgpr_workgroup_id_x 1
.end_amdhsa_kernel
''' % nm
    return out

if __name__ == '__main__':
    for spec in sys.argv[1:]:
        opt = {}
        outf = None
        for kv in spec.split(','):
            if kv.startswith('-o'): outf = kv[2:]
            elif kv:
                k, v = kv.split('='); opt[k] = int(v)
        if outf is None:
            outf = 'kf_%s.s' % '_'.join('%s%d' % kv for kv in opt.items())
        txt = build(opt)
        if opt.get('pg', 0):
            import pgpass
            txt = pgpass.layout(txt, 0x300, opt.get('vb', 0))
        open(outf, 'w').write(txt); print(outf)
```
